```python
import torch

def _softmax(x, axis=-1):
    return torch.softmax(x, dim=axis)
def _gelu(x):
    return torch.nn.functional.gelu(x, approximate="tanh")
def _silu(x):
    return torch.nn.functional.silu(x)
def _sigmoid(x):
    return torch.sigmoid(x)
def _layernorm(x, axis=-1, eps=1e-5):
    m = x.mean(dim=axis, keepdim=True)
    v = x.var(dim=axis, keepdim=True, unbiased=False)
    return (x - m) / torch.sqrt(v + eps)
def _scatter_add(tgt, idx, src, axis=0):
    return tgt.clone().index_add_(axis, idx, src)
def _segment_sum(src, seg, n):
    out = torch.zeros((n,) + src.shape[1:], dtype=src.dtype)
    return out.index_add_(0, seg, src)
def _pad(x, pw):
    flat = tuple(v for pair in reversed(pw) for v in pair)
    return torch.nn.functional.pad(x, flat)

kernel_name = 'sequential_preLN__linear_attn_block__mixer_s_mlp__prompt'

def setup_inputs():

    _w = (lambda a: (lambda t: t.to(torch.bfloat16) if t.is_floating_point() else t)(torch.as_tensor(a)))
    def _A_setup():
        B, S, D = 1, 2048, 576
        return {
            "x": _w((lambda *s: torch.randn(*s, dtype=torch.bfloat16) * 0.05)(B, S, D)),
            "wqkv": _w((lambda *s: torch.randn(*s, dtype=torch.bfloat16) * 0.05)(D, 3 * D)),
            "wo": _w((lambda *s: torch.randn(*s, dtype=torch.bfloat16) * 0.05)(D, D)),
        }
    _A_in = _A_setup()

    def _B_setup():
        B, S, D, F = 1, 2048, 576, 4608
        return {
            "x":  _w((lambda *s: torch.randn(*s, dtype=torch.bfloat16) * 0.05)(B, S, D)),
            "w1": _w((lambda *s: torch.randn(*s, dtype=torch.bfloat16) * 3.2)(D, D) * (D ** -0.5)),
            "w2": _w((lambda *s: torch.randn(*s, dtype=torch.bfloat16) * 3.2)(D, D) * (D ** -0.5)),
            "w3": _w((lambda *s: torch.randn(*s, dtype=torch.bfloat16) * 3.2)(D, F) * (D ** -0.5)),
            "w4": _w((lambda *s: torch.randn(*s, dtype=torch.bfloat16) * 1.6)(F, D) * (F ** -0.5)),
        }
    _B_in = _B_setup()

    return {
        "A_x": _A_in["x"],
        "A_wqkv": _A_in["wqkv"],
        "A_wo": _A_in["wo"],
        "B_x": _B_in["x"],
        "B_w1": _B_in["w1"],
        "B_w2": _B_in["w2"],
        "B_w3": _B_in["w3"],
        "B_w4": _B_in["w4"],
    }

def reference(A_x, A_wqkv, A_wo, B_x, B_w1, B_w2, B_w3, B_w4):
    def _A_ref(x, wqkv, wo):
        B, S, D = x.shape
        H = 32; Dh = D // H
        qkv = (lambda x, *d: x.permute(*d))((x @ wqkv).reshape(B, S, 3, H, Dh), 2, 0, 3, 1, 4)
        q, k, v = qkv[0], qkv[1], qkv[2]
        phi = lambda t: torch.where(t > 0, t + 1, torch.exp(t)) + 1e-6
        pq, pk = phi(q), phi(k)
        kv = torch.einsum("bhsd,bhse->bhde", pk, v)
        z = torch.einsum("bhsd->bhd", pk)
        num = torch.einsum("bhqd,bhde->bhqe", pq, kv)
        den = torch.einsum("bhqd,bhd->bhq", pq, z)[..., None] + 1e-6
        o = num / den
        return (lambda x, *d: x.permute(*d))(o, 0, 2, 1, 3).reshape(B, S, D) @ wo

    def _B_ref(x, w1, w2, w3, w4):
        B, S, D = x.shape
        h = _gelu(_layernorm(x, axis=-1) @ w1)
        c = D // 4
        g0 = _pad(h[:, :, 0*c:1*c], ((0, 0), (1, 0), (0, 0)))[:, :S, :]
        g1 = _pad(h[:, :, 1*c:2*c], ((0, 0), (0, 1), (0, 0)))[:, 1:, :]
        g2 = _pad(h[:, :, 2*c:3*c], ((0, 0), (2, 0), (0, 0)))[:, :S, :]
        g3 = _pad(h[:, :, 3*c:   ], ((0, 0), (0, 2), (0, 0)))[:, 2:, :]
        hs = torch.concatenate([g0, g1, g2, g3], axis=-1) @ w2
        x1 = x + hs
        h2 = _gelu(_layernorm(x1, axis=-1) @ w3) @ w4
        return x1 + h2

    x = A_x
    h = x + _A_ref(_layernorm(x, axis=-1), A_wqkv, A_wo)
    h2 = h + _B_ref(_layernorm(h, axis=-1), B_w1, B_w2, B_w3, B_w4)
    return h2
```

```python
import re

def v(i, n=1):
    return f"v{i}" if n == 1 else f"v[{i}:{i+n-1}]"
def s(i, n=1):
    return f"s{i}" if n == 1 else f"s[{i}:{i+n-1}]"

_REG = re.compile(r"^(-|\|)?(abs\()?([vsa])(\d+|\[(\d+):(\d+)\])\)?\|?$")

def parse_reg(tok):
    t = tok.strip()
    if t.startswith("-"): t = t[1:]
    if t.startswith("abs(") and t.endswith(")"): t = t[4:-1]
    if t.startswith("|") and t.endswith("|"): t = t[1:-1]
    if t == "vcc": return ("s", 106, 107)
    if t == "vcc_lo": return ("s", 106, 106)
    if t == "vcc_hi": return ("s", 107, 107)
    if t == "exec": return ("s", 126, 127)
    if t == "exec_lo": return ("s", 126, 126)
    if t == "exec_hi": return ("s", 127, 127)
    if t == "m0": return ("s", 124, 124)
    if t == "scc": return None
    m = re.match(r"^([vs])(\d+)$", t)
    if m: return (m.group(1), int(m.group(2)), int(m.group(2)))
    m = re.match(r"^([vs])\[(\d+):(\d+)\]$", t)
    if m: return (m.group(1), int(m.group(2)), int(m.group(3)))
    return None

TRANS = ("v_exp_f32", "v_log_f32", "v_rcp_f32", "v_rsq_f32", "v_sqrt_f32", "v_sin_f32", "v_cos_f32", "v_rcp_iflag_f32")

class Ins:
    __slots__ = ("text", "op", "ops", "mods", "kind", "vdef", "vuse", "sdef", "suse", "dpp", "trans", "dot",
                 "mfma_c", "mfma_ab", "passes", "target", "lds_dma", "store_data", "comment")
    def __init__(self, text):
        self.text = text
        t = text.split(";")[0].strip()
        parts = t.split(None, 1)
        self.op = parts[0]
        rest = parts[1] if len(parts) > 1 else ""
        ops, cur, depth = [], "", 0
        for ch in rest:
            if ch in "[(": depth += 1
            if ch in "])": depth -= 1
            if ch == "," and depth == 0:
                ops.append(cur.strip()); cur = ""
            else: cur += ch
        if cur.strip(): ops.append(cur.strip())
        mods = ""
        if ops:
            last = ops[-1].split(None, 1)
            if len(last) > 1:
                ops[-1] = last[0]; mods = last[1]
        self.ops, self.mods = ops, mods
        self.vdef, self.vuse, self.sdef, self.suse = set(), set(), set(), set()
        self.dpp = False; self.trans = False; self.dot = False
        self.mfma_c = None; self.mfma_ab = set(); self.passes = 0; self.target = None
        self.lds_dma = False; self.store_data = set()
        self._classify()

    def _add(self, tok, d):
        r = parse_reg(tok)
        if r is None: return
        k, lo, hi = r
        tgt = (self.vdef if d else self.vuse) if k == "v" else (self.sdef if d else self.suse)
        for i in range(lo, hi + 1): tgt.add(i)

    def _classify(self):
        op, ops, mods = self.op, self.ops, self.mods
        allmods = mods
        if op.startswith("v_mfma"):
            self.kind = "mfma"
            self._add(ops[0], True)
            for o in ops[1:4]: self._add(o, False)
            r = parse_reg(ops[3]); self.mfma_c = r
            for o in ops[1:3]:
                r2 = parse_reg(o)
                if r2: self.mfma_ab |= set(range(r2[1], r2[2] + 1))
            self.passes = 8 if ("32x32" in op) else 4
            self.suse |= {126, 127}
        elif op.startswith("v_"):
            self.kind = "valu"
            base = op.replace("_e32", "").replace("_e64", "").replace("_dpp", "").replace("_sdwa", "")
            self.trans = base in TRANS
            self.dot = base.startswith("v_dot2")
            self.dpp = any(x in allmods for x in ("quad_perm", "row_", "wave_")) or op.endswith("_dpp")
            if base.startswith("v_cmp"):
                self._add(ops[0], True)
                for o in ops[1:]: self._add(o, False)
            elif base in ("v_readfirstlane_b32", "v_readlane_b32"):
                self._add(ops[0], True)
                for o in ops[1:]: self._add(o, False)
            elif base.startswith("v_permlane") and "swap" in base:
                for o in ops[:2]:
                    self._add(o, True); self._add(o, False)
            elif base in ("v_add_co_u32", "v_sub_co_u32", "v_subrev_co_u32"):
                self._add(ops[0], True); self._add(ops[1], True)
                for o in ops[2:]: self._add(o, False)
            elif base in ("v_addc_co_u32", "v_subb_co_u32"):
                self._add(ops[0], True); self._add(ops[1], True)
                for o in ops[2:]: self._add(o, False)
            else:
                self._add(ops[0], True)
                for o in ops[1:]: self._add(o, False)
                if base in ("v_fmac_f32", "v_dot2c_f32_bf16", "v_writelane_b32", "v_pk_fmac_f16") or self.dpp:
                    self._add(ops[0], False)
                if base == "v_cndmask_b32" and len(ops) == 3:
                    self.suse |= {106, 107}
            self.suse |= {126, 127}
        elif op.startswith("ds_"):
            self.kind = "ds"
            if op.startswith("ds_read") or op.startswith("ds_bpermute") or op.startswith("ds_permute") or op.startswith("ds_swizzle"):
                self._add(ops[0], True)
                for o in ops[1:]: self._add(o, False)
            elif "_rtn" in op:
                self._add(ops[0], True)
                for o in ops[1:]: self._add(o, False)
            else:
                for o in ops: self._add(o, False)
            self.suse |= {126, 127}
        elif op.startswith("buffer_") or op.startswith("global_"):
            self.kind = "vmem"
            toks = allmods.split()
            if op in ("buffer_inv", "buffer_wbl2"):
                pass
            elif op.startswith("buffer_load"):
                if "lds" in toks:
                    self.lds_dma = True
                    for o in ops: self._add(o, False)
                    self.suse.add(124)
                else:
                    self._add(ops[0], True)
                    for o in ops[1:]: self._add(o, False)
            elif op.startswith("buffer_store"):
                for o in ops: self._add(o, False)
                r = parse_reg(ops[0]);
                if r[2] - r[1] >= 2: self.store_data = set(range(r[1], r[2] + 1))
            elif op.startswith("buffer_atomic"):
                for o in ops: self._add(o, False)
                if "sc0" in toks: self._add(ops[0], True)
            elif op.startswith("global_load"):
                self._add(ops[0], True)
                for o in ops[1:]: self._add(o, False)
            elif op.startswith("global_store"):
                for o in ops: self._add(o, False)
                r = parse_reg(ops[1])
                if r[2] - r[1] >= 2: self.store_data = set(range(r[1], r[2] + 1))
            elif op.startswith("global_atomic"):
                if "sc0" in toks:
                    self._add(ops[0], True)
                    for o in ops[1:]: self._add(o, False)
                else:
                    for o in ops: self._add(o, False)
            else:
                raise ValueError("unknown vmem " + op)
            self.suse |= {126, 127}
        elif op.startswith("s_load") or op.startswith("s_memtime") or op.startswith("s_memrealtime"):
            self.kind = "smem"
            self._add(ops[0], True)
            for o in ops[1:]: self._add(o, False)
        elif op.startswith("s_"):
            self.kind = "salu"
            if op in ("s_branch",) or op.startswith("s_cbranch"):
                self.kind = "branch"; self.target = ops[0]
                if "vcc" in op: self.suse |= {106, 107}
                if "exec" in op: self.suse |= {126, 127}
            elif op in ("s_waitcnt", "s_nop", "s_barrier", "s_endpgm", "s_sleep", "s_setprio", "s_sethalt"):
                pass
            elif op.startswith("s_cmp") or op.startswith("s_bitcmp"):
                for o in ops: self._add(o, False)
            elif op in ("s_setpc_b64",):
                for o in ops: self._add(o, False)
            elif op == "s_getreg_b32" or op == "s_getpc_b64":
                self._add(ops[0], True)
            else:
                self._add(ops[0], True)
                for o in ops[1:]: self._add(o, False)
                if "saveexec" in op:
                    self.sdef |= {126, 127}; self.suse |= {126, 127}
                if op in ("s_addk_i32", "s_mulk_i32", "s_cmov_b32"):
                    self._add(ops[0], False)
        else:
            raise ValueError("unknown op: " + self.text)

    def states(self):
        if self.op == "s_nop": return int(self.ops[0], 0) + 1
        return 1


def required(P, C):
    r = 0
    cv_all = C.vuse | C.vdef
    if P.kind == "valu":
        if P.vdef:
            if C.kind == "mfma" and (P.vdef & C.vuse): r = max(r, 2)
            if C.kind == "valu":
                if C.dpp and (P.vdef & C.vuse): r = max(r, 2)
                if C.op.startswith("v_permlane") and (P.vdef & C.vuse): r = max(r, 2)
                if C.op.startswith(("v_readlane", "v_readfirstlane")) and (P.vdef & C.vuse): r = max(r, 1)
            if P.trans and (P.vdef & C.vuse) and not (C.kind == "valu" and C.trans): r = max(r, 1)
            if P.trans and (P.vdef & C.vuse) and C.kind == "valu" and C.trans: r = max(r, 1)
            if P.dot and (P.vdef & cv_all):
                same = (C.op == P.op)
                if same and len(C.ops) >= 3:
                    ab = set()
                    srcs = C.ops[1:3]
                    for o in srcs:
                        rr = parse_reg(o)
                        if rr and rr[0] == "v": ab |= set(range(rr[1], rr[2] + 1))
                    if P.vdef & ab: r = max(r, 3)
                else:
                    r = max(r, 3)
        if P.sdef:
            sd = P.sdef - {126, 127}
            if sd & C.suse:
                if C.kind == "valu":
                    if C.op.startswith(("v_readlane", "v_writelane")): r = max(r, 4)
                    else: r = max(r, 2)
                elif C.kind == "mfma": r = max(r, 2)
                elif C.kind == "vmem": r = max(r, 5)
                elif C.kind in ("salu", "smem"): r = max(r, 1)
    if P.kind == "mfma":
        lat = 8 if P.passes == 4 else 12
        if P.vdef & cv_all:
            if C.kind == "mfma":
                cset = set(range(C.mfma_c[1], C.mfma_c[2] + 1)) if C.mfma_c and C.mfma_c[0] == "v" else set()
                if P.vdef & C.mfma_ab: r = max(r, lat)
                if P.vdef & cset:
                    if cset == P.vdef and C.passes == P.passes: pass
                    else: r = max(r, lat - 2)
                if (P.vdef & C.vdef) and not (P.vdef & cset):
                    if not (C.vdef == P.vdef and C.passes == P.passes): r = max(r, lat - 2)
            else:
                r = max(r, lat)
        if P.mfma_c and P.mfma_c[0] == "v" and C.kind == "valu":
            cs = set(range(P.mfma_c[1], P.mfma_c[2] + 1))
            if cs & C.vdef: r = max(r, 3 if P.passes == 4 else 7)
    if P.kind == "vmem" and P.store_data:
        if P.store_data & C.vdef:
            r = max(r, 2 if C.kind == "valu" else 1)
    if P.kind == "salu" and 124 in P.sdef and C.kind == "vmem" and C.lds_dma:
        r = max(r, 1)
    return r


class Asm:
    def __init__(self):
        self.items = []
        self.uid = 0
    def __call__(self, text):
        for line in text.split("\n"):
            line = line.strip()
            if not line: continue
            if line.startswith(";"):
                self.items.append(("r", "    " + line)); continue
            self.items.append(("i", Ins(line)))
    def label(self, name): self.items.append(("l", name))
    def raw(self, text): self.items.append(("r", text))
    def comment(self, text): self.items.append(("r", "    ; " + text))
    def newlabel(self, base="L"):
        self.uid += 1
        return f"{base}_{self.uid}"

    def fix_hazards(self, maxw=14):
        items = self.items
        def build_idx():
            lab = {}
            for i, (k, x) in enumerate(items):
                if k == "l": lab[x] = i
            br = {}
            for i, (k, x) in enumerate(items):
                if k == "i" and x.kind == "branch": br.setdefault(x.target, []).append(i)
            return lab, br
        total = 0
        changed = True
        rounds = 0
        while changed and rounds < 5:
            changed = False; rounds += 1
            lab, br = build_idx()
            i = 0
            inserts = []
            for i, (k, C) in enumerate(items):
                if k != "i" or C.kind == "branch" and False: continue
                need = 0
                stack = [(i - 1, 0, False)]
                seen = set()
                while stack:
                    j, d, via = stack.pop()
                    while j >= 0 and d < maxw:
                        kk, P = items[j]
                        if kk == "l":
                            for b in br.get(P, []):
                                if (b, d) not in seen:
                                    seen.add((b, d)); stack.append((b, d, True))
                            j -= 1; continue
                        if kk == "r":
                            j -= 1; continue
                        if P.op in ("s_endpgm", "s_branch", "s_setpc_b64") and not via:
                            break
                        via = False
                        rq = required(P, C)
                        if rq > d: need = max(need, rq - d)
                        d += P.states()
                        j -= 1
                if need > 0: inserts.append((i, need))
            if inserts:
                changed = True
                for i, n in reversed(inserts):
                    total += n
                    while n > 0:
                        m = min(n, 16)
                        items.insert(i, ("i", Ins(f"s_nop {m-1}")))
                        n -= m
        return total

    def check_waits(self, entry_labels, nwaves=12, maxsteps=20000000):
        items = self.items
        lab = {x: i for i, (k, x) in enumerate(items) if k == "l"}
        errors = set()
        ops = {"eq": lambda x, y: x == y, "lg": lambda x, y: x != y, "lt": lambda x, y: x < y, "ge": lambda x, y: x >= y,
               "gt": lambda x, y: x > y, "le": lambda x, y: x <= y}
        n = 0
        for e in entry_labels:
          for wave in range(nwaves):
            start = lab[e]
            stack = [(start, (), (), None)]
            seen = set()
            while stack:
                pc, vm, lg, scc = stack.pop()
                while True:
                    n += 1
                    if n > maxsteps: raise RuntimeError("check_waits: too many steps")
                    if pc >= len(items): break
                    k, x = items[pc]
                    if k == "l":
                        key = (pc, vm, lg, scc)
                        if key in seen: break
                        seen.add(key); pc += 1; continue
                    if k == "r": pc += 1; continue
                    touched = x.vuse | x.vdef
                    stouched = x.suse | x.sdef
                    if "nocheck" not in x.text:
                        for q, nm in ((vm, "vm"), (lg, "lgkm")):
                            for ent in q:
                                regs, isS, txt = ent
                                if regs and ((not isS and (regs & touched)) or (isS and (regs & stouched))):
                                    errors.add(f"[w{wave}] '{x.text}' touches regs pending from '{txt}' ({nm})")
                    if x.op == "s_waitcnt":
                        m = re.search(r"vmcnt\((\d+)\)", x.text)
                        if m:
                            c = int(m.group(1))
                            if len(vm) > c: vm = vm[len(vm) - c:] if c > 0 else ()
                        m = re.search(r"lgkmcnt\((\d+)\)", x.text)
                        if m:
                            c = int(m.group(1))
                            if any(ent[1] for ent in lg):
                                if c == 0: lg = ()
                                else: errors.add(f"[w{wave}] counted lgkmcnt with SMEM outstanding at '{x.text}'")
                            elif len(lg) > c: lg = lg[len(lg) - c:] if c > 0 else ()
                    elif x.kind == "vmem":
                        vm = vm + ((frozenset(x.vdef), False, x.text),)
                        if len(vm) > 63:
                            errors.add(f"[w{wave}] vmcnt overflow (>63) at '{x.text}'")
                            vm = vm[-63:]
                    elif x.kind == "ds":
                        lg = lg + ((frozenset(x.vdef), False, x.text),)
                    elif x.kind == "smem":
                        lg = lg + ((frozenset(x.sdef), True, x.text),)
                    if x.kind in ("salu",) and x.op not in ("s_waitcnt", "s_nop", "s_barrier", "s_sleep", "s_setprio", "s_mov_b32", "s_mov_b64", "s_cselect_b32"):
                        scc = None
                        m = re.match(r"s_cmp_(\w+)_u32", x.op)
                        if m and x.ops[0] == "s3":
                            try: scc = ops[m.group(1)](wave, int(x.ops[1], 0))
                            except ValueError: scc = None
                    if x.op == "s_endpgm": break
                    if x.kind == "branch":
                        t = lab[x.target]
                        if x.op == "s_branch":
                            pc = t; continue
                        if x.op in ("s_cbranch_scc0", "s_cbranch_scc1") and scc is not None:
                            taken = scc if x.op == "s_cbranch_scc1" else (not scc)
                            if taken: pc = t
                            else: pc += 1
                            continue
                        stack.append((t, vm, lg, scc))
                    pc += 1
        merged = {}
        for er in errors:
            w, msg = er.split("] ", 1)
            merged.setdefault(msg, []).append(w[1:])
        return sorted(f"{','.join(sorted(ws))}: {m}" for m, ws in merged.items())

    def text(self):
        out = []
        for k, x in self.items:
            if k == "i": out.append("    " + x.text)
            elif k == "l": out.append(x + ":")
            else: out.append(x)
        return "\n".join(out) + "\n"
```

```python
from asmlib import *
NAME = "sequential_preLN__linear_attn_block__mixer_s_mlp__prompt"
WS_EPOCH = 0x0
F_P1  = 0x1000
F_Z   = 0x2000
F_P0  = 0x3000
F_PK  = 0x4000
F_XN  = 0x5000
F_P2  = 0x08000
F_P2B = 0x10000
F_P3  = 0x18000
F_MLP = 0x20000
KV    = 0x30000
KV_HEAD = 1536
HSTAT = 0x40000
X1STAT= 0x50000
C1P   = 0x60000
C3P   = 0x62000
PQ    = 0x100000
HB    = 0x340000
HH    = 0x580000
X1    = 0x7C0000
WSP   = 0xA00000
WSP_SZ = 663552
W3P   = 0xC00000
W4P   = 0x1200000
WQP   = 0x1720000
XN    = 0x1960000
PART  = 0x1C00000
WS_SIZE = 0x4000000
LDS_A0 = 0
LDS_A1 = 73728
LDS_MISC = 147456
LDS_TOTAL = 163840
S_WG = 2; S_WAVE = 3
SRD_X = 8; SRD_W = 12; SRD_WS = 16; SRD_OUT = 20; SRD_SRC = 24
S_T = 28; S_XCD = 29; S_LOC = 30
S_TMP = 31
M_Q0 = 64; M_Q1 = 66; M_Q2 = 68; M_Q3 = 70
S_TO = 72
LOG2E = 0x3fb8aa3b
EPS_1EM5 = 0x3727c5ac
EPS_1EM6 = 0x358637bd
ONES_BF16 = 0x3f803f80
import struct
def f2u(x): return struct.unpack("<I", struct.pack("<f", x))[0]

def srd(a, sreg, ptr_lo, size):
    a(f"s_mov_b32 s{sreg}, s{ptr_lo}")
    a(f"s_mov_b32 s{sreg+1}, s{ptr_lo+1}")
    a(f"s_mov_b32 s{sreg+2}, {size:#x}")
    a(f"s_mov_b32 s{sreg+3}, 0x20000")

def set_flag(a, base_const, s_index_off, vtmp=2, vtmp2=3):
    a(f"s_mov_b64 exec, 1")
    a(f"v_mov_b32 v{vtmp}, s{S_T}")
    a(f"v_mov_b32 v{vtmp2}, {base_const:#x}")
    a(f"buffer_store_dword v{vtmp}, v{vtmp2}, s[{SRD_WS}:{SRD_WS+3}], s{s_index_off} offen sc1")
    a(f"s_mov_b64 exec, -1")

def poll_flags(a, vaddr, vval, nlanes_mask_lo, nlanes_mask_hi=0, ndw=1, sleep=2):
    L = a.newlabel("Lpoll"); D = a.newlabel("Lpolld")
    a(f"s_mov_b32 exec_lo, {nlanes_mask_lo:#x}")
    a(f"s_mov_b32 exec_hi, {nlanes_mask_hi:#x}")
    a(f"s_mov_b32 s{S_TO}, 0x40000")
    a.label(L)
    if ndw == 1:
        a(f"buffer_load_dword v{vval}, v{vaddr}, s[{SRD_WS}:{SRD_WS+3}], 0 offen sc1")
        a("s_waitcnt vmcnt(0)")
        a(f"v_cmp_ne_u32 vcc, s{S_T}, v{vval}")
    else:
        assert ndw == 4
        a(f"buffer_load_dwordx4 v[{vval}:{vval+3}], v{vaddr}, s[{SRD_WS}:{SRD_WS+3}], 0 offen sc1")
        a("s_waitcnt vmcnt(0)")
        a(f"v_xor_b32 v{vval}, s{S_T}, v{vval}")
        a(f"v_xor_b32 v{vval+1}, s{S_T}, v{vval+1}")
        a(f"v_xor_b32 v{vval+2}, s{S_T}, v{vval+2}")
        a(f"v_xor_b32 v{vval+3}, s{S_T}, v{vval+3}")
        a(f"v_or_b32 v{vval}, v{vval}, v{vval+1}")
        a(f"v_or3_b32 v{vval}, v{vval}, v{vval+2}, v{vval+3}")
        a(f"v_cmp_ne_u32 vcc, 0, v{vval}")
    a(f"s_cbranch_vccz {D}")
    a(f"s_sub_u32 s{S_TO}, s{S_TO}, 1")
    a(f"s_cbranch_scc1 {D}")
    a(f"s_sleep {sleep}")
    a(f"s_branch {L}")
    a.label(D)
    a("s_mov_b64 exec, -1")

STAMPS = 0x80000
STAMP_ON = False
def stamp(a, idx):
    if not STAMP_ON: return
    a(f"s_memtime s[90:91]")
    a("s_waitcnt lgkmcnt(0)")
    a(f"s_mov_b32 s{74+idx}, s90")
def stamp_dump(a):
    if not STAMP_ON: return
    a("s_mul_i32 s31, s2, 12")
    a("s_add_u32 s31, s31, s3")
    a("s_lshl_b32 s31, s31, 6")
    a(f"s_add_u32 s31, s31, {STAMPS:#x}")
    a("s_mov_b64 exec, 1")
    a("v_mov_b32 v3, 0")
    for i in range(16):
        a(f"v_mov_b32 v2, s{74+i}")
        a(f"buffer_store_dword v2, v3, s[{SRD_WS}:{SRD_WS+3}], s31 offen offset:{4*i}")
    a("s_mov_b64 exec, -1")
```

```python
from common import *
WSR = f"s[{SRD_WS}:{SRD_WS+3}]"

def mfma(d, A, B, c=None):
    c = f"v[{d}:{d+3}]" if c is None else c
    return f"v_mfma_f32_16x16x32_bf16 v[{d}:{d+3}], v[{A}:{A+3}], v[{B}:{B+3}], {c}"

def interleave(a, mf, other, lead=0, per=1):
    mf = list(mf); other = list(other)
    for _ in range(min(lead, len(mf))): a(mf.pop(0))
    while mf or other:
        if other:
            o = other.pop(0)
            if isinstance(o, (list, tuple)):
                for z in o: a(z)
            else: a(o)
        for _ in range(per):
            if mf: a(mf.pop(0))

class Stream:
    def __init__(self, NB, D, wreg, vlane16, soff, step, sc1=True, tile_off=None):
        self.NB, self.D, self.wreg, self.vl, self.soff, self.step, self.sc1 = NB, D, wreg, vlane16, soff, step, sc1
        self.tile_off = tile_off or [1024 * t for t in range(NB)]
    def reg(self, slot, t): return self.wreg + 4 * (slot * self.NB + t)
    def loads(self, slot):
        L = []
        for t in range(self.NB):
            r = self.reg(slot, t)
            L.append(f"buffer_load_dwordx4 v[{r}:{r+3}], v{self.vl}, {WSR}, s{self.soff} offen offset:{self.tile_off[t]}" + (" sc1" if self.sc1 else ""))
        L.append(f"s_add_u32 s{self.soff}, s{self.soff}, {self.step}")
        return L

def act_reads(xf, buf, NR, xe, xo, u, rt_stride=18432):
    base = xo if (u & 1) else xe
    return [f"ds_read_b128 v[{xf+4*(buf*NR+rt)}:{xf+4*(buf*NR+rt)+3}], v{base} offset:{rt*rt_stride + (u>>1)*128}" for rt in range(NR)]

def kloop(a, st, NR, xf, xe, xo, acc_of, w_is_A, trips, cnt_sreg, last_noload=True, extra=None):
    D, NB = st.D, st.NB
    assert D % 2 == 0
    def body(load, last):
        for u in range(D):
            cur = u & 1; nxt = 1 - cur
            mf = []
            for rt in range(NR):
                for t in range(NB):
                    x = xf + 4 * (cur * NR + rt); w = st.reg(u, t)
                    mf.append(mfma(acc_of(t, rt), w, x) if w_is_A[t] else mfma(acc_of(t, rt), x, w))
            vm = (D - 1) * NB if load else (D - 1 - u) * NB
            a(f"s_waitcnt vmcnt({vm}) lgkmcnt(0)")
            if u == D - 1:
                if last: rd = []
                else:
                    a(f"v_add_u32 v{xe}, {(D//2)*128}, v{xe}")
                    a(f"v_add_u32 v{xo}, {(D//2)*128}, v{xo}")
                    rd = act_reads(xf, nxt, NR, xe, xo, 0)
            else:
                rd = act_reads(xf, nxt, NR, xe, xo, u + 1)
            interleave(a, mf, rd, lead=1, per=max(1, len(mf) // (len(rd) + 1)))
            if extra: extra(a, u)
            if load:
                for x in st.loads(u): a(x)
    nloop = trips - 1 if last_noload else trips
    if nloop >= 1:
        L = a.newlabel("Lk")
        if nloop > 1: a(f"s_mov_b32 s{cnt_sreg}, {nloop}")
        a.label(L)
        body(True, False if last_noload else False)
        if nloop > 1:
            a(f"s_sub_u32 s{cnt_sreg}, s{cnt_sreg}, 1")
            a(f"s_cmp_lg_u32 s{cnt_sreg}, 0")
            a(f"s_cbranch_scc1 {L}")
    if last_noload:
        body(False, True)
```

```python
from common import *
from p1 import XS, WSR, WQ, SRC, finish_epoch

def div_const_s(a, dst, src, mul, sh):
    a(f"s_mul_i32 s{dst}, s{src}, {mul}")
    a(f"s_lshr_b32 s{dst}, s{dst}, {sh}")

P0SCR = LDS_A1 + 16384
def p0_issue(a):
    a.comment("---- P0: wqkv prepack job (issue) ----")
    div_const_s(a, 43, 2, 3641, 16)
    a("s_mul_i32 s42, s43, 18")
    a("s_sub_u32 s42, s2, s42")
    a("s_sub_u32 s44, s3, 8")
    a("s_lshl_b32 s40, s43, 2")
    a("s_add_u32 s40, s40, s44")
    a("s_mul_i32 s40, s40, 18")
    a("s_add_u32 s40, s40, s42")
    a(f"s_mul_i32 s45, s42, {32*3456}")
    a("s_lshl_b32 s46, s43, 7")
    a("s_add_u32 s45, s45, s46")
    a(f"s_mul_i32 s46, s44, {8*3456}")
    a("s_add_u32 s45, s45, s46")
    a(f"s_mul_i32 s47, s44, 6144")
    a(f"s_add_u32 s47, s47, {P0SCR}")
    T = 12
    for r in range(3):
        a(f"v_add_u32 v{T}, {64*r}, v1")
        a(f"v_mul_u32_u24 v{T+1}, 171, v{T}")
        a(f"v_lshrrev_b32 v{T+1}, 13, v{T+1}")
        a(f"v_mul_u32_u24 v{T+2}, 48, v{T+1}")
        a(f"v_sub_u32 v{T+2}, v{T}, v{T+2}")
        a(f"v_lshrrev_b32 v{T+3}, 4, v{T+2}")
        a(f"v_and_b32 v{T+4}, 15, v{T+2}")
        a(f"v_mul_u32_u24 v{T+1}, 3456, v{T+1}")
        a(f"v_lshl_add_u32 v{T+1}, v{T+4}, 4, v{T+1}")
        a(f"v_add_u32 v{T+3}, 1, v{T+3}")
        a(f"v_cmp_eq_u32 vcc, 3, v{T+3}")
        a(f"v_cndmask_b32 v{T+3}, v{T+3}, 0, vcc")
        a(f"v_mul_u32_u24 v{T+3}, 1152, v{T+3}")
        a(f"v_add_u32 v{20+r}, v{T+1}, v{T+3}")
    stamp(a, 1)
    for g in range(2):
        for r in range(3):
            a(f"s_add_u32 m0, s47, {1024*(3*g+r)}")
            a("s_nop 0")
            a(f"buffer_load_dwordx4 v{20+r}, {WQ}, s45 offen lds")
        if g == 0: a(f"s_add_u32 s45, s45, {4*3456}")
    stamp(a, 10)
    a("s_lshl_b32 s46, s44, 3")
    a("s_lshr_b32 s48, 0x10080800, s46"); a("s_and_b32 s48, s48, 0xff")
    a("s_lshr_b32 s49, 0x08280020, s46"); a("s_and_b32 s49, s49, 0xff")
    a("s_lshl_b32 s50, s43, 4")
    a("s_lshl_b32 s51, s44, 5")
    a("s_add_u32 s50, s50, s51")
    a(f"s_add_u32 s50, s50, {P0SCR}")
    a(f"v_lshrrev_b32 v{T}, 4, v1")
    a(f"v_lshlrev_b32 v{T}, 3, v{T}")
    a(f"v_bfe_u32 v{T+1}, v1, 2, 2")
    a(f"v_add_u32 v{T}, v{T}, v{T+1}")
    a(f"v_mul_u32_u24 v{T}, 768, v{T}")
    a(f"v_add_u32 v{T}, s50, v{T}")
    a(f"v_and_b32 v{T+1}, 3, v1")
    a(f"v_lshl_add_u32 v{T+2}, v{T+1}, 3, v{T}")
    a(f"v_add_u32 v{T+2}, s48, v{T+2}")
    a(f"v_min_u32 v{T+1}, 2, v{T+1}")
    a(f"v_lshlrev_b32 v{T+1}, 8, v{T+1}")
    a(f"v_add3_u32 v{T+3}, v{T}, v{T+1}, s49")
    a("s_lshl_b32 s46, s40, 12")
    a(f"s_add_u32 s46, s46, {WQP:#x}")
    a(f"v_lshlrev_b32 v{T+4}, 4, v1")
    stamp(a, 11)
    a("s_waitcnt vmcnt(0)")
    stamp(a, 2)

def p0_finish(a):
    T = 12
    F = 28
    for t in range(3):
        a(f"ds_read_b64_tr_b16 v[{F+4*t}:{F+4*t+1}], v{T+2} offset:{256*t}")
        a(f"ds_read_b64_tr_b16 v[{F+4*t+2}:{F+4*t+3}], v{T+2} offset:{256*t+4*768}")
    a(f"ds_read_b64_tr_b16 v[{F+12}:{F+13}], v{T+3}")
    a(f"ds_read_b64_tr_b16 v[{F+14}:{F+15}], v{T+3} offset:{4*768}")
    a("s_mov_b32 s50, 0xf000f000"); a("s_mov_b32 s51, 0xf000f000")
    a("s_waitcnt lgkmcnt(0)")
    for r in range(4):
        a(f"v_cndmask_b32 v{F+12+r}, v{F+12+r}, 0, s[50:51]")
    for t in range(4):
        a(f"buffer_store_dwordx4 v[{F+4*t}:{F+4*t+3}], v{T+4}, {WSR}, s46 offen offset:{1024*t} sc1")
    stamp(a, 4)
    a("s_waitcnt vmcnt(0)")
    stamp(a, 5)

def code_prefetch(a, code_start, code_end):
    a.comment("---- code prefetch (WGs >= 144, waves 10,11) ----")
    T = 12
    a("s_getpc_b64 s[32:33]")
    a.label("L_pc_ref")
    a(f"s_sub_u32 s32, s32, L_pc_ref-{code_start}")
    a("s_subb_u32 s33, s33, 0")
    a(f"s_sub_u32 s34, s{S_LOC}, 18")
    a("s_lshl_b32 s34, s34, 1")
    a("s_add_u32 s34, s34, s3")
    a("s_sub_u32 s34, s34, 10")
    a("s_lshl_b32 s34, s34, 11")
    a(f"v_lshlrev_b32 v{T}, 4, v1")
    a(f"v_add_u32 v{T}, s34, v{T}")
    for k in range(2):
        a(f"v_add_u32 v{T+1}, {1024*k}, v{T}")
        a(f"v_min_u32 v{T+1}, {code_end}-{code_start}-16, v{T+1}")
        a(f"global_load_dwordx4 v[{160+4*k}:{163+4*k}], v{T+1}, s[32:33]")

def zero_kv(a):
    T = 12
    Lskip = a.newlabel("Lz")
    a(f"s_cmp_lt_u32 s2, 248")
    a(f"s_cbranch_scc1 {Lskip}")
    for r in range(4): a(f"v_mov_b32 v{32+r}, 0")
    a(f"v_lshlrev_b32 v{T}, 4, v1")
    a(f"s_sub_u32 s33, s2, 248")
    a(f"s_mul_i32 s31, s33, {4*KV_HEAD}")
    a(f"s_add_u32 s31, s31, {KV:#x}")
    for i in range(6):
        if i == 4:
            a(f"s_add_u32 s31, s31, 4096")
        a(f"buffer_store_dwordx4 v[32:35], v{T}, {WSR}, s31 offen offset:{1024*(i%4)} sc1")
    a("s_waitcnt vmcnt(0)")
    a.label(Lskip)

S_RS = 42; S_SRC0 = 43; S_D = 44
S_DSTEP = 48; S_CS = 49; S_ACT = 50; S_SCR = 51

def job_common_init(a):
    a(f"s_mov_b32 s{S_ACT}, 0")
    a(f"s_mov_b32 s{S_CS}, 0")
    a(f"s_mov_b32 s{S_RS}, 1152")

def job_setup_small(a, scr):
    job_common_init(a)
    a("s_load_dwordx2 s[32:33], s[0:1], 16")
    a("s_load_dwordx4 s[36:39], s[0:1], 32")
    a("s_sub_u32 s60, s2, 144")
    div_const_s(a, 58, 60, 19, 9)
    a("s_mul_i32 s59, s58, 27")
    a("s_sub_u32 s59, s60, s59")
    div_const_s(a, 52, 59, 57, 9)
    a("s_mul_i32 s53, s52, 9")
    a("s_sub_u32 s53, s59, s53")
    a("s_cmp_lt_u32 s60, 81")
    a(f"s_cselect_b32 s{S_ACT}, 1, 0")
    a("s_waitcnt lgkmcnt(0)")
    a("s_cmp_eq_u32 s58, 1")
    a("s_cselect_b32 s32, s36, s32"); a("s_cselect_b32 s33, s37, s33")
    a("s_cmp_eq_u32 s58, 2")
    a("s_cselect_b32 s32, s38, s32"); a("s_cselect_b32 s33, s39, s33")
    srd(a, SRD_SRC, 32, 663552)
    a(f"s_mul_i32 s{S_SRC0}, s52, {192*1152}")
    a(f"s_lshl_b32 s54, s53, 7")
    a(f"s_add_u32 s{S_SRC0}, s{S_SRC0}, s54")
    for tt in range(4):
        a(f"s_lshl_b32 s54, s53, 2")
        a(f"s_add_u32 s54, s54, {tt}")
        a("s_mul_i32 s54, s54, 18")
        a("s_mul_i32 s55, s52, 6")
        a("s_add_u32 s54, s54, s55")
        a("s_lshl_b32 s54, s54, 10")
        a(f"s_mul_i32 s55, s58, {WSP_SZ}")
        a("s_add_u32 s54, s54, s55")
        a(f"s_add_u32 s{S_D+tt}, s54, {WSP:#x}")
    a(f"s_mov_b32 s{S_DSTEP}, 1024")
    a(f"s_mul_i32 s54, s52, 2304")
    a(f"s_lshl_b32 s55, s53, 8")
    a("s_add_u32 s54, s54, s55")
    a(f"s_add_u32 s54, s54, {C1P:#x}")
    a("s_cmp_eq_u32 s58, 1")
    a(f"s_cselect_b32 s{S_CS}, s54, 0")
    a(f"s_mov_b32 s{S_SCR}, {scr}")

def job_setup_big(a, which, scr):
    job_common_init(a)
    a(f"s_load_dwordx2 s[4:5], s[0:1], {48 if which == 3 else 56}")
    div_const_s(a, 52, S_LOC, 57, 9)
    a("s_mul_i32 s53, s52, 9")
    a(f"s_sub_u32 s53, s{S_LOC}, s53")
    a(f"s_cmp_lt_u32 s{S_LOC}, 27")
    a(f"s_cselect_b32 s{S_ACT}, 1, 0")
    for tt in range(4):
        a(f"s_lshl_b32 s54, s53, 2")
        a(f"s_add_u32 s54, s54, {tt}")
        div_const_s(a, 55, 54, 43, 7)
        a("s_mul_i32 s56, s55, 3")
        a("s_sub_u32 s56, s54, s56")
        a(f"s_mul_i32 s57, s{S_XCD}, 12")
        a("s_add_u32 s57, s57, s55")
        a("s_mul_i32 s57, s57, 55296")
        a("s_lshl_b32 s56, s56, 10")
        a("s_add_u32 s57, s57, s56")
        a(f"s_mul_i32 s56, s52, {6*3072}")
        a("s_add_u32 s57, s57, s56")
        a(f"s_add_u32 s{S_D+tt}, s57, {(W3P if which == 3 else W4P):#x}")
    a(f"s_mov_b32 s{S_DSTEP}, 3072")
    a("s_waitcnt lgkmcnt(0)")
    if which == 3:
        srd(a, SRD_SRC, 4, 576 * 9216)
        a(f"s_mov_b32 s{S_RS}, 9216")
        a(f"s_mul_i32 s{S_SRC0}, s52, {192*9216}")
        a(f"s_mul_i32 s54, s{S_XCD}, 1152")
        a(f"s_add_u32 s{S_SRC0}, s{S_SRC0}, s54")
        a(f"s_lshl_b32 s54, s53, 7")
        a(f"s_add_u32 s{S_SRC0}, s{S_SRC0}, s54")
        a(f"s_mul_i32 s{S_CS}, s52, 18432")
        a(f"s_mul_i32 s54, s{S_XCD}, 2304")
        a(f"s_add_u32 s{S_CS}, s{S_CS}, s54")
        a(f"s_lshl_b32 s54, s53, 8")
        a(f"s_add_u32 s{S_CS}, s{S_CS}, s54")
        a(f"s_add_u32 s{S_CS}, s{S_CS}, {C3P:#x}")
    else:
        srd(a, SRD_SRC, 4, 4608 * 1152)
        a(f"s_mul_i32 s{S_SRC0}, s{S_XCD}, {576*1152}")
        a(f"s_mul_i32 s54, s52, {192*1152}")
        a(f"s_add_u32 s{S_SRC0}, s{S_SRC0}, s54")
        a(f"s_lshl_b32 s54, s53, 7")
        a(f"s_add_u32 s{S_SRC0}, s{S_SRC0}, s54")
    a(f"s_mov_b32 s{S_SCR}, {scr}")

JD = 44
JF = 20
JC = 36
def job_loads(a):
    a(f"v_lshrrev_b32 v12, 3, v1")
    a(f"v_mul_lo_u32 v12, v12, s{S_RS}")
    a(f"v_and_b32 v13, 7, v1")
    a(f"v_lshl_add_u32 v140, v13, 4, v12")
    a(f"s_mov_b32 s52, s{S_SRC0}")
    a(f"s_lshl_b32 s53, s{S_RS}, 3")
    for n in range(24):
        a(f"buffer_load_dwordx4 v[{JD+4*n}:{JD+4*n+3}], v140, {SRC}, s52 offen")
        a(f"s_add_u32 s52, s52, s53")

def job_run(a):
    a(f"v_lshrrev_b32 v12, 3, v1")
    a(f"v_mul_u32_u24 v12, 144, v12")
    a(f"v_and_b32 v13, 7, v1")
    a(f"v_lshl_add_u32 v141, v13, 4, v12")
    a(f"v_add_u32 v141, s{S_SCR}, v141")
    a(f"v_lshrrev_b32 v12, 4, v1")
    a(f"v_lshlrev_b32 v12, 3, v12")
    a(f"v_bfe_u32 v13, v1, 2, 2")
    a(f"v_add_u32 v12, v12, v13")
    a(f"v_mul_u32_u24 v12, 144, v12")
    a(f"v_and_b32 v13, 3, v1")
    a(f"v_lshl_add_u32 v142, v13, 3, v12")
    a(f"v_add_u32 v142, s{S_SCR}, v142")
    a(f"v_lshlrev_b32 v143, 4, v1")
    for t in range(4): a(f"v_mov_b32 v{JC+t}, 0")
    a(f"s_mov_b32 s54, {ONES_BF16:#x}")
    for u in range(6):
        a("s_waitcnt vmcnt(20)")
        for i in range(4):
            r = JD + 16 * u + 4 * i
            a(f"ds_write_b128 v141, v[{r}:{r+3}] offset:{1152*i}")
        a("s_waitcnt lgkmcnt(0)")
        for tt in range(4):
            a(f"ds_read_b64_tr_b16 v[{JF+4*tt}:{JF+4*tt+1}], v142 offset:{32*tt}")
            a(f"ds_read_b64_tr_b16 v[{JF+4*tt+2}:{JF+4*tt+3}], v142 offset:{32*tt+576}")
        a("s_waitcnt lgkmcnt(0)")
        for tt in range(4):
            a(f"buffer_store_dwordx4 v[{JF+4*tt}:{JF+4*tt+3}], v143, {WSR}, s{S_D+tt} offen sc1")
            a(f"s_add_u32 s{S_D+tt}, s{S_D+tt}, s{S_DSTEP}")
        for r in range(4):
            for tt in range(4):
                a(f"v_dot2_f32_bf16 v{JC+tt}, v{JF+4*tt+r}, s54, v{JC+tt}")
    Ls = a.newlabel("Ljs")
    a(f"s_cmp_eq_u32 s{S_CS}, 0")
    a(f"s_cbranch_scc1 {Ls}")
    for tt in range(4):
        a(f"v_mov_b32 v{12+tt}, v{JC+tt}")
    for tt in range(4):
        a(f"v_permlane32_swap_b32 v{JC+tt}, v{12+tt}")
    for tt in range(4):
        a(f"v_add_f32 v{JC+tt}, v{JC+tt}, v{12+tt}")
    for tt in range(4):
        a(f"v_mov_b32 v{12+tt}, v{JC+tt}")
    for tt in range(4):
        a(f"v_permlane16_swap_b32 v{JC+tt}, v{12+tt}")
    for tt in range(4):
        a(f"v_add_f32 v{JC+tt}, v{JC+tt}, v{12+tt}")
    a(f"v_lshlrev_b32 v12, 2, v1")
    a(f"s_mov_b64 exec, s[{M_Q0}:{M_Q0+1}]")
    for tt in range(4):
        a(f"buffer_store_dword v{JC+tt}, v12, {WSR}, s{S_CS} offen offset:{64*tt} sc1")
    a("s_mov_b64 exec, -1")
    a.label(Ls)
```

```python
from common import *
from gemm import *
import p1
from p1 import XS, frag_addrs, tile_dma_voff, tile_dma, V_T0, V_L16, V_XE, V_XO

S_RB32 = 61; S_S4 = 62; S_IDX = 63
L_TILE = 0
L_HS = 36864
L_STG = 46080
L_STAT = 55296
L_JOB = 57344
V_TD = 4
V_EP = 5
V_ST = 6
AF = 20
AC = 52
XR = 60
MS = 64
WLO = 120; WHI = 84
def wreg(ks): return WLO + 4 * ks if ks < 9 else WHI + 4 * (ks - 9)

def mid_mapping(a):
    a(f"s_lshl_b32 s{S_RB32}, s{S_XCD}, 3")
    a(f"s_lshr_b32 s31, s{S_LOC}, 2")
    a(f"s_add_u32 s{S_RB32}, s{S_RB32}, s31")
    a(f"s_and_b32 s{S_S4}, s{S_LOC}, 3")
    a(f"s_lshl_b32 s{S_IDX}, s{S_RB32}, 2")
    a(f"s_add_u32 s{S_IDX}, s{S_IDX}, s{S_S4}")

def w_loads(a, m, ks_list):
    a(f"s_mul_i32 s31, s{S_S4}, 9")
    a(f"s_add_u32 s31, s31, s3")
    a(f"s_mul_i32 s31, s31, {18*1024}")
    a(f"s_add_u32 s31, s31, {WSP + m*WSP_SZ + ks_list[0]*1024:#x}")
    for n, ks in enumerate(ks_list):
        r = wreg(ks)
        a(f"buffer_load_dwordx4 v[{r}:{r+3}], v{V_L16}, {WSR}, s31 offen offset:{(n%4)*1024} sc1")
        if n % 4 == 3: a("s_add_u32 s31, s31, 4096")

def small_gemm(a):
    frag_addrs(a, V_XE, V_XO, L_TILE)
    def rd(ks):
        base = V_XO if ks & 1 else V_XE
        s = AF + 8 * (ks % 4)
        return [f"ds_read_b128 v[{s+4*rt}:{s+4*rt+3}], v{base} offset:{rt*18432 + (ks>>1)*128}" for rt in range(2)]
    for ks in range(3):
        for x in rd(ks): a(x)
    for ks in range(18):
        if ks + 3 < 18:
            for x in rd(ks + 3): a(x)
            a("s_waitcnt lgkmcnt(6)")
        else:
            a(f"s_waitcnt lgkmcnt({2*(17-ks)})")
        s = AF + 8 * (ks % 4)
        for rt in range(2):
            a(mfma(AC + 4 * rt, wreg(ks), s + 4 * rt, "0" if ks == 0 else None))

def ep_addrs(a):
    t = V_T0
    a(f"v_and_b32 v{t}, 15, v1")
    a(f"v_lshrrev_b32 v{t+1}, 4, v1")
    a(f"v_mul_u32_u24 v{V_EP}, 288, v{t}")
    a(f"v_lshl_add_u32 v{V_EP}, v{t+1}, 3, v{V_EP}")
    a(f"s_lshl_b32 s31, s3, 5")
    a(f"v_add_u32 v{V_EP}, s31, v{V_EP}")
    a(f"v_lshlrev_b32 v{V_ST}, 3, v{t}")
    a(f"v_add_u32 v{V_ST}, {L_STAT}, v{V_ST}")

def stats_accum(a, p0, p1_, rt, t):
    a(f"v_mov_b32 v{t}, 0"); a(f"v_mov_b32 v{t+1}, 0")
    a(f"v_dot2_f32_bf16 v{t}, v{p0}, s52, v{t}")
    a(f"v_dot2_f32_bf16 v{t+1}, v{p0}, v{p0}, v{t+1}")
    a(f"v_dot2_f32_bf16 v{t}, v{p1_}, s52, v{t}")
    a(f"v_dot2_f32_bf16 v{t+1}, v{p1_}, v{p1_}, v{t+1}")
    a(f"ds_add_f32 v{V_ST}, v{t} offset:{128*rt}")
    a(f"ds_add_f32 v{V_ST}, v{t+1} offset:{128*rt+4}")

def zero_stats(a):
    a(f"v_lshlrev_b32 v12, 2, v1")
    a(f"v_add_u32 v12, {L_STAT}, v12")
    a("v_mov_b32 v13, 0")
    a("ds_write_b32 v12, v13")

def coop_store(a, lds_src, buf, stat_buf):
    L9 = a.newlabel("Lcs9"); Ld = a.newlabel("Lcsd")
    a("s_cmp_ge_u32 s3, 9")
    a(f"s_cbranch_scc1 {L9}")
    a(f"v_lshlrev_b32 v12, 4, v0")
    a(f"v_add_u32 v13, {lds_src}, v12")
    a(f"ds_read_b128 v[16:19], v13")
    a(f"s_mul_i32 s31, s{S_S4}, 589824")
    a(f"s_mul_i32 s32, s{S_RB32}, 9216")
    a("s_add_u32 s31, s31, s32")
    a(f"s_add_u32 s31, s31, {buf:#x}")
    a("s_waitcnt lgkmcnt(0)")
    a(f"buffer_store_dwordx4 v[16:19], v12, {WSR}, s31 offen sc1")
    a(f"s_branch {Ld}")
    a.label(L9)
    if stat_buf is not None:
        a("s_cmp_eq_u32 s3, 9")
        a(f"s_cbranch_scc0 {Ld}")
        a(f"s_mov_b64 exec, s[{M_Q0}:{M_Q0+1}]")
        a(f"v_add_u32 v13, {L_STAT}, v{V_L16}")
        a(f"ds_read_b128 v[16:19], v13")
        a(f"s_lshl_b32 s31, s{S_IDX}, 8")
        a(f"s_add_u32 s31, s31, {stat_buf:#x}")
        a("s_waitcnt lgkmcnt(0)")
        a(f"buffer_store_dwordx4 v[16:19], v{V_L16}, {WSR}, s31 offen sc1")
        a("s_mov_b64 exec, -1")
    a.label(Ld)

def flag_idx128(a, base):
    a(f"s_lshl_b32 s31, s{S_IDX}, 7")
    set_flag(a, base, 31, 12, 13)

RAWB = 20
def p2_ostage(a):
    a.comment("---- P2 o-stage ----")
    t = V_T0
    a(f"v_and_b32 v{t}, 15, v1")
    a(f"v_lshrrev_b32 v{t+1}, 4, v1")
    a(f"v_lshlrev_b32 v2, 6, v{t}")
    a(f"v_lshl_add_u32 v2, v{t+1}, 5, v2")
    a(f"v_lshlrev_b32 v7, 2, v{t}")
    a(f"v_add_u32 v{t+2}, 16, v{t}")
    a(f"v_min_u32 v{t+2}, 18, v{t+2}")
    a(f"v_lshlrev_b32 v10, 6, v{t+2}")
    a(f"v_lshl_add_u32 v10, v{t+1}, 5, v10")
    a(f"v_lshlrev_b32 v11, 2, v{t+2}")
    a(f"v_mul_u32_u24 v{t+3}, 36, v{t}")
    a(f"v_lshl_add_u32 v{t+3}, v{t+1}, 4, v{t+3}")
    PQA = t + 3
    for hh in range(4):
        b = RAWB + 24 * hh
        for r in range(16): a(f"v_mov_b32 v{b+r}, 0")
    a(f"s_lshl_b32 s32, s3, 2")
    a(f"s_mul_i32 s33, s32, {KV_HEAD}")
    a(f"s_add_u32 s33, s33, {KV:#x}")
    a(f"s_mul_i32 s34, s32, 73728")
    a(f"s_mul_i32 s35, s{S_RB32}, {32*36}")
    a("s_add_u32 s34, s34, s35")
    a(f"s_add_u32 s34, s34, {PQ:#x}")
    for hh in range(4):
        b = RAWB + 24 * hh
        a("s_mov_b32 exec_lo, -1"); a("s_mov_b32 exec_hi, 0")
        a(f"buffer_load_dwordx4 v[{b}:{b+3}], v2, {WSR}, s33 offen sc1")
        a(f"buffer_load_dwordx4 v[{b+4}:{b+7}], v2, {WSR}, s33 offen offset:16 sc1")
        a("s_mov_b32 exec_lo, 0x44474447")
        a(f"buffer_load_dwordx4 v[{b+8}:{b+11}], v10, {WSR}, s33 offen sc1")
        a(f"buffer_load_dwordx4 v[{b+12}:{b+15}], v10, {WSR}, s33 offen offset:16 sc1")
        a("s_mov_b32 exec_lo, 0"); a("s_mov_b32 exec_hi, 0xffff")
        a(f"buffer_load_dword v{b}, v7, {WSR}, s33 offen offset:1280 sc1 ; nocheck")
        a(f"buffer_load_dword v{b+1}, v7, {WSR}, s33 offen offset:1408 sc1 ; nocheck")
        a("s_mov_b32 exec_hi, 0x4447")
        a(f"buffer_load_dword v{b+8}, v11, {WSR}, s33 offen offset:1280 sc1 ; nocheck")
        a(f"buffer_load_dword v{b+9}, v11, {WSR}, s33 offen offset:1408 sc1 ; nocheck")
        a("s_mov_b64 exec, -1")
        a(f"buffer_load_dwordx4 v[{b+16}:{b+19}], v{PQA}, {WSR}, s34 offen sc1")
        a(f"buffer_load_dwordx4 v[{b+20}:{b+23}], v{PQA}, {WSR}, s34 offen offset:576 sc1")
        if hh < 3:
            a(f"s_add_u32 s33, s33, {KV_HEAD}")
            a(f"s_add_u32 s34, s34, 73728")

def p2_ostage_compute(a, nyounger):
    t = V_T0
    a(f"v_lshrrev_b32 v163, 4, v1")
    a(f"v_cmp_gt_u32 vcc, 3, v163")
    a(f"v_cndmask_b32 v2, 0, -1, vcc")
    a(f"v_cmp_gt_u32 vcc, 2, v163")
    a(f"v_cndmask_b32 v7, 0, -1, vcc")
    a(f"v_and_b32 v{t}, 15, v1")
    a(f"v_mul_u32_u24 v10, 1152, v{t}")
    a(f"v_and_b32 v11, 7, v{t}")
    a(f"s_mul_i32 s32, s3, 9")
    a(f"s_mov_b32 s33, {EPS_1EM6:#x}")
    for hh in range(4):
        b = RAWB + 24 * hh
        a(f"s_waitcnt vmcnt({nyounger + 10*(3-hh)})")
        for k in range(2):
            rb = b + 8 * k
            for u in range(4):
                a(f"v_cvt_pk_bf16_f32 v{rb+u}, v{rb+2*u}, v{rb+2*u+1}")
        for rt in range(2):
            p = b + 16 + 4 * rt
            a(f"v_and_b32 v{p}, v2, v{p}")
            for u in range(1, 4): a(f"v_and_b32 v{p+u}, v7, v{p+u}")
        D0 = [b + 4, 12]; D1 = [b + 12, 16]
        for rt in range(2):
            a(mfma(D0[rt], b, b + 16 + 4 * rt, "0"))
            a(mfma(D1[rt], b + 8, b + 16 + 4 * rt, "0"))
        B0 = 36 * hh + 4 * (hh & 1)
        a(f"v_lshlrev_b32 v156, 3, v163")
        a(f"v_add_u32 v156, {B0}, v156")
        a(f"v_lshrrev_b32 v157, 4, v156")
        a(f"v_add_u32 v157, s32, v157")
        a(f"v_xor_b32 v157, v157, v11")
        a(f"v_and_b32 v156, 15, v156")
        a(f"v_lshl_add_u32 v157, v157, 4, v156")
        a(f"v_add_u32 v157, v157, v10")
        BL = 36 * hh + (0 if hh & 1 else 32)
        a(f"s_add_u32 s34, s32, {BL >> 4}")
        a(f"v_xor_b32 v158, s34, v11")
        a(f"v_lshlrev_b32 v158, 4, v158")
        a(f"v_add3_u32 v158, v158, v10, {BL & 15}")
        for rt in range(2):
            d0, d1 = D0[rt], D1[rt]
            a(f"v_add_f32 v159, s33, v{d1+2}")
            a(f"v_rcp_f32 v159, v159")
            for i in range(4): a(f"v_mul_f32 v{d0+i}, v{d0+i}, v159")
            a(f"v_mul_f32 v{d1}, v{d1}, v159"); a(f"v_mul_f32 v{d1+1}, v{d1+1}, v159")
            a(f"v_cvt_pk_bf16_f32 v160, v{d0}, v{d0+1}")
            a(f"v_cvt_pk_bf16_f32 v161, v{d0+2}, v{d0+3}")
            a(f"v_cvt_pk_bf16_f32 v162, v{d1}, v{d1+1}")
            a(f"ds_write_b64 v157, v[160:161] offset:{18432*rt}")
            a(f"s_mov_b64 exec, s[{M_Q0}:{M_Q0+1}]")
            a(f"ds_write_b32 v158, v162 offset:{18432*rt}")
            a("s_mov_b64 exec, -1")

def xres_loads(a, srd, base_s, dst):
    t = V_T0
    a(f"v_and_b32 v{t}, 15, v1")
    a(f"v_lshrrev_b32 v{t+1}, 4, v1")
    a(f"v_mul_u32_u24 v{t}, 1152, v{t}")
    a(f"v_lshl_add_u32 v{t}, v{t+1}, 3, v{t}")
    a(f"s_mul_i32 s31, s{S_RB32}, {32*1152}")
    a(f"s_mul_i32 s32, s{S_S4}, 288")
    a("s_add_u32 s31, s31, s32")
    a("s_lshl_b32 s32, s3, 5")
    a("s_add_u32 s31, s31, s32")
    a(f"buffer_load_dwordx2 v[{dst}:{dst+1}], v{t}, {srd}, s31 offen")
    a(f"s_add_u32 s31, s31, 18432")
    a(f"buffer_load_dwordx2 v[{dst+2}:{dst+3}], v{t}, {srd}, s31 offen")

def p2_epilogue(a):
    a(f"s_mov_b32 s52, {ONES_BF16:#x}")
    t = V_T0
    for rt in range(2):
        x0, x1 = XR + 2 * rt, XR + 2 * rt + 1
        ac = AC + 4 * rt
        a(f"v_lshlrev_b32 v{t}, 16, v{x0}"); a(f"v_and_b32 v{t+1}, 0xffff0000, v{x0}")
        a(f"v_lshlrev_b32 v{t+2}, 16, v{x1}"); a(f"v_and_b32 v{t+3}, 0xffff0000, v{x1}")
        for i in range(4): a(f"v_add_f32 v{ac+i}, v{ac+i}, v{t+i}")
        a(f"v_cvt_pk_bf16_f32 v{x0}, v{ac}, v{ac+1}")
        a(f"v_cvt_pk_bf16_f32 v{x1}, v{ac+2}, v{ac+3}")
        a(f"ds_write_b64 v{V_EP}, v[{x0}:{x1}] offset:{L_HS + 16*288*rt}")
        stats_accum(a, x0, x1, rt, t + 4)

def row_stats_loads(a, stat_buf, dst):
    a(f"v_and_b32 v12, 15, v1")
    a(f"v_lshlrev_b32 v12, 3, v12")
    a(f"s_lshl_b32 s31, s{S_RB32}, 10")
    a(f"s_add_u32 s31, s31, {stat_buf:#x}")
    for rt in range(2):
        for s4 in range(4):
            r = dst + 8 * rt + 2 * s4
            a(f"buffer_load_dwordx2 v[{r}:{r+1}], v12, {WSR}, s31 offen offset:{256*s4 + 128*rt} sc1")

def gelu_pairs(a, regs, tmp):
    n = len(regs)
    for r in regs: assert r % 2 == 0
    for u, r in enumerate(regs):
        a(f"v_pk_mul_f32 v[{tmp+2*u}:{tmp+2*u+1}], v[{r}:{r+1}], v[{r}:{r+1}]")
    for u, r in enumerate(regs):
        a(f"v_pk_fma_f32 v[{tmp+2*u}:{tmp+2*u+1}], v[{tmp+2*u}:{tmp+2*u+1}], s[54:55], v[{GA}:{GA+1}]")
    for u, r in enumerate(regs):
        a(f"v_pk_mul_f32 v[{tmp+2*u}:{tmp+2*u+1}], v[{tmp+2*u}:{tmp+2*u+1}], v[{r}:{r+1}]")
    for u in range(2 * n): a(f"v_exp_f32 v{tmp+u}, v{tmp+u}")
    for u, r in enumerate(regs):
        a(f"v_pk_add_f32 v[{tmp+2*u}:{tmp+2*u+1}], v[{tmp+2*u}:{tmp+2*u+1}], s[58:59]")
    for u in range(2 * n): a(f"v_rcp_f32 v{tmp+u}, v{tmp+u}")
    for u, r in enumerate(regs):
        a(f"v_pk_mul_f32 v[{r}:{r+1}], v[{r}:{r+1}], v[{tmp+2*u}:{tmp+2*u+1}]")

GA = 18
GELU_A = -2.0 * 0.7978845608028654 * 1.4426950408889634
GELU_B = GELU_A * 0.044715
def gelu_consts(a):
    a(f"s_mov_b32 s54, {f2u(GELU_B):#x}"); a(f"s_mov_b32 s55, {f2u(GELU_B):#x}")
    a(f"s_mov_b32 s58, 1.0"); a(f"s_mov_b32 s59, 1.0")
    a(f"v_mov_b32 v{GA}, {f2u(GELU_A):#x}"); a(f"v_mov_b32 v{GA+1}, {f2u(GELU_A):#x}")

def stats_finish(a, raw, double_ln):
    inv = f2u(1.0 / 576)
    for rt in range(2):
        b = raw + 8 * rt
        a(f"v_add_f32 v{b}, v{b}, v{b+2}"); a(f"v_add_f32 v{b+1}, v{b+1}, v{b+3}")
        a(f"v_add_f32 v{b+4}, v{b+4}, v{b+6}"); a(f"v_add_f32 v{b+5}, v{b+5}, v{b+7}")
        a(f"v_add_f32 v{b}, v{b}, v{b+4}"); a(f"v_add_f32 v{b+1}, v{b+1}, v{b+5}")
        m, sc, r1 = MS + rt, MS + 2 + rt, MS + 4 + rt
        a(f"v_mul_f32 v{m}, {inv:#x}, v{b}")
        a(f"v_mul_f32 v{b+1}, {inv:#x}, v{b+1}")
        a(f"v_fma_f32 v{b+1}, -v{m}, v{m}, v{b+1}")
        a(f"v_max_f32 v{b+1}, 0, v{b+1}")
        a(f"v_add_f32 v{b+2}, {EPS_1EM5:#x}, v{b+1}")
        a(f"v_rsq_f32 v{r1}, v{b+2}")
        if double_ln:
            a(f"v_mul_f32 v{b+2}, v{r1}, v{r1}")
            a(f"v_mul_f32 v{b+2}, v{b+2}, v{b+1}")
            a(f"v_add_f32 v{b+2}, {EPS_1EM5:#x}, v{b+2}")
            a(f"v_rsq_f32 v{b+2}, v{b+2}")
            a(f"v_mul_f32 v{sc}, v{r1}, v{b+2}")
        else:
            a(f"v_mov_b32 v{sc}, v{r1}")

def p2b_epilogue(a):
    C1 = MS + 6
    t = V_T0
    gelu_consts(a)
    for rt in range(2):
        ac = AC + 4 * rt; m, sc = MS + rt, MS + 2 + rt
        for i in range(4):
            a(f"v_fma_f32 v{ac+i}, -v{m}, v{C1+i}, v{ac+i}")
        for i in range(4):
            a(f"v_mul_f32 v{ac+i}, v{ac+i}, v{sc}")
    gelu_pairs(a, [AC, AC + 2, AC + 4, AC + 6], AF)
    for rt in range(2):
        ac = AC + 4 * rt
        a(f"v_cvt_pk_bf16_f32 v{XR+2*rt}, v{ac}, v{ac+1}")
        a(f"v_cvt_pk_bf16_f32 v{XR+2*rt+1}, v{ac+2}, v{ac+3}")
        a(f"ds_write_b64 v{V_EP}, v[{XR+2*rt}:{XR+2*rt+1}] offset:{L_STG + 16*288*rt}")

def p3_epilogue(a):
    a(f"s_mov_b32 s52, {ONES_BF16:#x}")
    t = V_T0
    for rt in range(2):
        a(f"ds_read_b64 v[{XR+2*rt}:{XR+2*rt+1}], v{V_EP} offset:{L_HS + 16*288*rt}")
    a("s_waitcnt lgkmcnt(0)")
    for rt in range(2):
        x0, x1 = XR + 2 * rt, XR + 2 * rt + 1
        ac = AC + 4 * rt; m, r1 = MS + rt, MS + 4 + rt
        a(f"v_lshlrev_b32 v{t}, 16, v{x0}"); a(f"v_and_b32 v{t+1}, 0xffff0000, v{x0}")
        a(f"v_lshlrev_b32 v{t+2}, 16, v{x1}"); a(f"v_and_b32 v{t+3}, 0xffff0000, v{x1}")
        for i in range(4): a(f"v_sub_f32 v{t+i}, v{t+i}, v{m}")
        for i in range(4): a(f"v_fma_f32 v{ac+i}, v{t+i}, v{r1}, v{ac+i}")
        a(f"v_cvt_pk_bf16_f32 v{x0}, v{ac}, v{ac+1}")
        a(f"v_cvt_pk_bf16_f32 v{x1}, v{ac+2}, v{ac+3}")
        a(f"ds_write_b64 v{V_EP}, v[{x0}:{x1}] offset:{L_STG + 16*288*rt}")
        stats_accum(a, x0, x1, rt, t + 4)

def c1_loads(a):
    a(f"v_lshrrev_b32 v12, 4, v1")
    a(f"v_lshlrev_b32 v12, 4, v12")
    a(f"s_mul_i32 s31, s{S_S4}, 576")
    a(f"s_lshl_b32 s32, s3, 6")
    a("s_add_u32 s31, s31, s32")
    a(f"s_add_u32 s31, s31, {C1P:#x}")
    a(f"buffer_load_dwordx4 v[72:75], v12, {WSR}, s31 offen sc1")
    a(f"buffer_load_dwordx4 v[76:79], v12, {WSR}, s31 offen offset:2304 sc1")
    a(f"s_add_u32 s31, s31, 4608")
    a(f"buffer_load_dwordx4 v[80:83], v12, {WSR}, s31 offen sc1")
def c1_sum(a):
    C1 = MS + 6
    for i in range(4):
        a(f"v_add_f32 v{76+i}, v{76+i}, v{80+i}")
    for i in range(4):
        a(f"v_add_f32 v{76+i}, v{76+i}, v{72+i}")
    for i in range(4):
        a(f"v_mov_b32 v{C1+i}, v{76+i}")

def p3_tile_dma(a):
    t = V_T0
    a(f"s_lshl_b32 s31, s3, 6")
    a(f"v_add_u32 v{t}, s31, v1")
    a(f"v_mul_u32_u24 v{t+1}, 911, v{t}")
    a(f"v_lshrrev_b32 v{t+1}, 16, v{t+1}")
    a(f"v_mul_u32_u24 v{t+2}, 72, v{t+1}")
    a(f"v_sub_u32 v{t+2}, v{t}, v{t+2}")
    a(f"v_xor_b32 v{t+2}, v{t+2}, v{t+1}")
    a(f"v_mul_u32_u24 v{t+3}, 57, v{t+2}")
    a(f"v_lshrrev_b32 v{t+3}, 10, v{t+3}")
    a(f"v_lshrrev_b32 v{t+4}, 1, v{t+3}")
    a(f"v_add_u32 v{t+4}, 1, v{t+4}")
    a(f"v_and_b32 v{t+5}, 1, v{t+3}")
    a(f"v_cmp_eq_u32 vcc, 1, v{t+5}")
    a(f"v_sub_u32 v{t+5}, 0, v{t+4}")
    a(f"v_cndmask_b32 v{t+4}, v{t+5}, v{t+4}, vcc")
    a(f"v_add_u32 v{t+1}, v{t+1}, v{t+4}")
    a(f"s_lshl_b32 s32, s{S_RB32}, 5")
    a(f"v_add_u32 v{t+1}, s32, v{t+1}")
    a(f"v_add_u32 v{t+4}, 2, v{t+4}")
    a(f"v_mul_u32_u24 v{t+4}, 288, v{t+4}")
    a(f"v_add_u32 v{t+4}, v{V_TD}, v{t+4}")
    a(f"s_mul_i32 s33, s{S_RB32}, 9216")
    a(f"s_add_u32 s33, s33, {HH - 576:#x}")
    a(f"s_lshl_b32 s31, s3, 10")
    a(f"v_mov_b32 v{t+6}, 0x7fffffff")
    for g in range(4):
        a(f"v_cmp_gt_u32 vcc, 2048, v{t+1}")
        a(f"v_cndmask_b32 v{t+5}, v{t+6}, v{t+4}, vcc")
        a(f"s_mov_b32 m0, s31")
        a(f"s_add_u32 s31, s31, 9216")
        a(f"buffer_load_dwordx4 v{t+5}, {WSR}, s33 offen sc1 lds")
        a(f"s_add_u32 s33, s33, 2304")
        a(f"v_add_u32 v{t+1}, 8, v{t+1}")
```

```python
from common import *
from gemm import *
import p1, mid
from p1 import frag_addrs, tile_dma_voff, tile_dma, V_T0, V_L16, V_XE, V_XO
from mid import gelu_consts, gelu_pairs, GA

S_J8 = 61; S_RB = 62
S_SO = 45; S_CNT = 47
L_X1 = LDS_A0; L_G = LDS_A1
L_RS = LDS_MISC
V_TD = 4
XF = 20
ACC = 52
WR = 100
DEPTH = 4
C3 = 148
RS = 160

def mlp_mapping(a):
    a(f"s_mov_b32 s{S_J8}, s{S_XCD}")
    a(f"s_mov_b32 s{S_RB}, s{S_LOC}")

def mlp_prologue(a):
    mlp_mapping(a)
    a(f"v_lshlrev_b32 v{V_L16}, 4, v1")
    a(f"s_mul_i32 s{S_SO}, s{S_J8}, 12")
    a(f"s_add_u32 s{S_SO}, s{S_SO}, s3")
    a(f"s_mul_i32 s{S_SO}, s{S_SO}, 55296")
    a(f"s_add_u32 s{S_SO}, s{S_SO}, {W3P:#x}")
    tile_dma_voff(a, V_TD, "s4")
    frag_addrs(a, V_XE, V_XO, L_X1)

def c3_loads(a):
    a(f"v_lshrrev_b32 v12, 4, v1")
    a(f"v_lshlrev_b32 v12, 4, v12")
    a(f"s_mul_i32 s31, s{S_J8}, 2304")
    a(f"s_mul_i32 s32, s3, 192")
    a("s_add_u32 s31, s31, s32")
    a(f"s_add_u32 s31, s31, {C3P:#x}")
    for k in range(3):
        for t in range(3):
            r = ACC + 12 * k + 4 * t
            a(f"buffer_load_dwordx4 v[{r}:{r+3}], v12, {WSR}, s31 offen offset:{64*t} sc1")
        if k < 2: a("s_add_u32 s31, s31, 18432")
def c3_sum(a):
    for i in range(12): a(f"v_add_f32 v{C3+i}, v{ACC+i}, v{ACC+12+i}")
    for i in range(12): a(f"v_add_f32 v{C3+i}, v{C3+i}, v{ACC+24+i}")

def row_stats(a):
    a(f"v_lshrrev_b32 v12, 5, v1")
    a(f"v_lshlrev_b32 v12, 10, v12")
    a(f"v_and_b32 v13, 31, v1")
    a(f"v_lshl_add_u32 v12, v13, 3, v12")
    a(f"s_lshl_b32 s31, s{S_RB}, 11")
    a(f"s_add_u32 s31, s31, {X1STAT:#x}")
    for s4 in range(4):
        a(f"buffer_load_dwordx2 v[{ACC+36+2*s4}:{ACC+37+2*s4}], v12, {WSR}, s31 offen offset:{256*s4} sc1")
def row_stats_finish(a):
    b = ACC + 36
    inv = f2u(1.0 / 576)
    a(f"v_add_f32 v{b}, v{b}, v{b+2}"); a(f"v_add_f32 v{b+1}, v{b+1}, v{b+3}")
    a(f"v_add_f32 v{b+4}, v{b+4}, v{b+6}"); a(f"v_add_f32 v{b+5}, v{b+5}, v{b+7}")
    a(f"v_add_f32 v{b}, v{b}, v{b+4}"); a(f"v_add_f32 v{b+1}, v{b+1}, v{b+5}")
    a(f"v_mul_f32 v{b}, {inv:#x}, v{b}")
    a(f"v_mul_f32 v{b+1}, {inv:#x}, v{b+1}")
    a(f"v_fma_f32 v{b+1}, -v{b}, v{b}, v{b+1}")
    a(f"v_max_f32 v{b+1}, 0, v{b+1}")
    a(f"v_add_f32 v{b+1}, {EPS_1EM5:#x}, v{b+1}")
    a(f"v_rsq_f32 v{b+2}, v{b+1}")
    a(f"v_mul_f32 v{b+3}, v{b}, v{b+2}")
    a(f"v_lshlrev_b32 v12, 3, v1")
    a(f"v_add_u32 v12, {L_RS}, v12")
    a(f"ds_write_b64 v12, v[{b+2}:{b+3}]")

def gemm1_epilogue(a):
    t = V_T0
    a(f"v_and_b32 v{t}, 15, v1")
    a(f"v_lshlrev_b32 v{t+1}, 3, v{t}")
    a(f"v_add_u32 v{t+1}, {L_RS}, v{t+1}")
    for rt in range(4):
        a(f"ds_read_b64 v[{RS+2*rt}:{RS+2*rt+1}], v{t+1} offset:{128*rt}")
    gelu_consts(a)
    a(f"v_lshrrev_b32 v{t+1}, 4, v1")
    a(f"v_lshrrev_b32 v{t+2}, 1, v{t+1}")
    a(f"s_mul_i32 s31, s3, 6")
    a(f"v_add_u32 v{t+2}, s31, v{t+2}")
    a(f"v_and_b32 v{t+3}, 7, v{t}")
    a(f"v_mul_u32_u24 v{t+4}, 1152, v{t}")
    a(f"v_and_b32 v{t+1}, 1, v{t+1}")
    a(f"v_lshl_add_u32 v{t+4}, v{t+1}, 3, v{t+4}")
    a(f"v_add_u32 v{t+4}, {L_G}, v{t+4}")
    for tt in range(3):
        a(f"v_add_u32 v{t+1}, {2*tt}, v{t+2}")
        a(f"v_xor_b32 v{t+1}, v{t+1}, v{t+3}")
        a(f"v_lshl_add_u32 v{XF+28+tt}, v{t+1}, 4, v{t+4}")
    a("s_waitcnt lgkmcnt(0)")
    for rt in range(4):
        rs, mr = RS + 2 * rt, RS + 2 * rt + 1
        for tt in range(3):
            ac = ACC + 16 * tt + 4 * rt
            for i in range(4):
                a(f"v_mul_f32 v{XF+i}, v{mr}, v{C3+4*tt+i}")
            for i in range(4):
                a(f"v_fma_f32 v{ac+i}, v{ac+i}, v{rs}, -v{XF+i}")
        regs = []
        for tt in range(3):
            ac = ACC + 16 * tt + 4 * rt
            regs += [ac, ac + 2]
        gelu_pairs(a, regs, XF + 4)
        for tt in range(3):
            ac = ACC + 16 * tt + 4 * rt
            a(f"v_cvt_pk_bf16_f32 v{XF+16+2*tt}, v{ac}, v{ac+1}")
            a(f"v_cvt_pk_bf16_f32 v{XF+17+2*tt}, v{ac+2}, v{ac+3}")
            a(f"ds_write_b64 v{XF+28+tt}, v[{XF+16+2*tt}:{XF+17+2*tt}] offset:{18432*rt}")

def gemm2_epilogue(a):
    t = V_T0
    a(f"v_and_b32 v{t}, 15, v1")
    a(f"v_lshrrev_b32 v{t+1}, 4, v1")
    a(f"v_mul_u32_u24 v{t+2}, 1152, v{t}")
    a(f"v_lshl_add_u32 v{t+2}, v{t+1}, 3, v{t+2}")
    a(f"s_mul_i32 s31, s3, 96")
    a(f"v_add_u32 v{t+2}, s31, v{t+2}")
    if L_X1: a(f"v_add_u32 v{t+2}, {L_X1}, v{t+2}")
    for rt in range(4):
        for tt in range(3):
            ac = ACC + 16 * tt + 4 * rt
            d = XF + 2 * ((3 * rt + tt) % 8)
            a(f"v_cvt_pk_bf16_f32 v{d}, v{ac}, v{ac+1}")
            a(f"v_cvt_pk_bf16_f32 v{d+1}, v{ac+2}, v{ac+3}")
            a(f"ds_write_b64 v{t+2}, v[{d}:{d+1}] offset:{18432*rt + 32*tt}")

def part_store(a):
    a(f"v_lshlrev_b32 v12, 4, v0")
    for i in range(6):
        a(f"ds_read_b128 v[{XF+4*i}:{XF+4*i+3}], v12 offset:{L_X1 + 12288*i}")
    a(f"s_mul_i32 s31, s{S_J8}, {2048*1152}")
    a(f"s_mul_i32 s32, s{S_RB}, 73728")
    a("s_add_u32 s31, s31, s32")
    a(f"s_add_u32 s31, s31, {PART:#x}")
    for i in range(6):
        a(f"s_waitcnt lgkmcnt({5-i})")
        a(f"buffer_store_dwordx4 v[{XF+4*i}:{XF+4*i+3}], v12, {WSR}, s31 offen sc1")
        if i < 5: a("s_add_u32 s31, s31, 12288")

def final_reduce(a):
    OUT = f"s[{SRD_OUT}:{SRD_OUT+3}]"
    Ld = a.newlabel("Lfrd")
    a("s_cmp_ge_u32 s3, 9"); a(f"s_cbranch_scc1 {Ld}")
    a(f"v_mul_u32_u24 v12, 911, v0")
    a(f"v_lshrrev_b32 v12, 16, v12")
    a(f"v_mul_u32_u24 v13, 72, v12")
    a(f"v_sub_u32 v13, v0, v13")
    a(f"v_lshlrev_b32 v14, 4, v0")
    a(f"v_mul_u32_u24 v15, 57, v13")
    a(f"v_lshrrev_b32 v15, 10, v15")
    a(f"v_mul_u32_u24 v16, 18, v15")
    a(f"v_sub_u32 v16, v13, v16")
    a(f"v_mul_u32_u24 v12, 288, v12")
    a(f"v_lshl_add_u32 v12, v16, 4, v12")
    a(f"s_mov_b32 s31, 589824")
    a(f"v_mul_lo_u32 v15, v15, s31")
    a(f"v_add_u32 v15, v15, v12")
    a(f"s_lshl_b32 s32, s{S_RB}, 6")
    a(f"s_lshl_b32 s33, s{S_J8}, 3")
    a("s_add_u32 s32, s32, s33")
    a("s_mul_i32 s33, s32, 1152")
    a("s_mul_i32 s34, s32, 288")
    a(f"s_add_u32 s35, s33, {PART:#x}")
    for j in range(8):
        a(f"buffer_load_dwordx4 v[{XF+4*j}:{XF+4*j+3}], v14, {WSR}, s35 offen sc1")
        if j < 7: a(f"s_add_u32 s35, s35, {2048*1152}")
    a(f"s_add_u32 s35, s34, {HB:#x}")
    a(f"buffer_load_dwordx4 v[{ACC}:{ACC+3}], v15, {WSR}, s35 offen sc1")
    a(f"s_add_u32 s35, s34, {X1:#x}")
    a(f"buffer_load_dwordx4 v[{ACC+4}:{ACC+7}], v15, {WSR}, s35 offen sc1")
    S = ACC + 8
    a("s_waitcnt vmcnt(2)")
    for i in range(4):
        a(f"v_lshlrev_b32 v{S+2*i}, 16, v{XF+i}")
        a(f"v_and_b32 v{S+2*i+1}, 0xffff0000, v{XF+i}")
    for j in range(1, 8):
        for i in range(4):
            r = XF + 4 * j + i
            a(f"v_lshlrev_b32 v{S+8}, 16, v{r}")
            a(f"v_and_b32 v{S+9}, 0xffff0000, v{r}")
            a(f"v_pk_add_f32 v[{S+2*i}:{S+2*i+1}], v[{S+2*i}:{S+2*i+1}], v[{S+8}:{S+9}]")
    a("s_waitcnt vmcnt(0)")
    for b in (ACC + 4, ACC):
        for i in range(4):
            a(f"v_lshlrev_b32 v{S+8}, 16, v{b+i}")
            a(f"v_and_b32 v{S+9}, 0xffff0000, v{b+i}")
            a(f"v_pk_add_f32 v[{S+2*i}:{S+2*i+1}], v[{S+2*i}:{S+2*i+1}], v[{S+8}:{S+9}]")
    for i in range(4):
        a(f"v_cvt_pk_bf16_f32 v{XF+i}, v{S+2*i}, v{S+2*i+1}")
    a(f"buffer_store_dwordx4 v[{XF}:{XF+3}], v14, {OUT}, s33 offen")
    a.label(Ld)
```

```python
from common import *
from gemm import *

XS = f"s[{SRD_X}:{SRD_X+3}]"; WQ = f"s[{SRD_W}:{SRD_W+3}]"; SRC = f"s[{SRD_SRC}:{SRD_SRC+3}]"

S_J = 48; S_RBK = 49
def prologue(a):
    a("s_cmp_ge_u32 s2, 256")
    a("s_cbranch_scc1 L_exit")
    a("s_load_dwordx4 s[4:7], s[0:1], 0")
    a("s_load_dwordx2 s[32:33], s[0:1], 64")
    a("s_load_dwordx2 s[34:35], s[0:1], 80")
    a("v_lshrrev_b32 v2, 6, v0")
    a("v_and_b32 v1, 63, v0")
    a("v_readfirstlane_b32 s3, v2")
    a(f"s_and_b32 s{S_XCD}, s2, 7")
    a(f"s_lshr_b32 s{S_LOC}, s2, 3")
    a(f"s_mov_b32 s{M_Q0}, 0xffff");     a(f"s_mov_b32 s{M_Q0+1}, 0")
    a(f"s_mov_b32 s{M_Q1}, 0xffff0000"); a(f"s_mov_b32 s{M_Q1+1}, 0")
    a(f"s_mov_b32 s{M_Q2}, 0");          a(f"s_mov_b32 s{M_Q2+1}, 0xffff")
    a(f"s_mov_b32 s{M_Q3}, 0");          a(f"s_mov_b32 s{M_Q3+1}, 0xffff0000")
    a("s_waitcnt lgkmcnt(0)")
    srd(a, SRD_X, 4, 2048 * 1152)
    srd(a, SRD_W, 6, 576 * 3456)
    srd(a, SRD_WS, 34, WS_SIZE)
    srd(a, SRD_OUT, 32, 2048 * 1152)
    a(f"s_load_dword s{S_T}, s[34:35], 0")
    p1_mapping(a)

def p1_mapping(a):
    a(f"s_and_b32 s48, s{S_XCD}, 1"); a("s_lshl_b32 s48, s48, 2"); a(f"s_and_b32 s31, s{S_LOC}, 3"); a("s_add_u32 s48, s48, s31")
    a(f"s_lshr_b32 s49, s{S_XCD}, 1"); a("s_lshl_b32 s49, s49, 3"); a(f"s_lshr_b32 s31, s{S_LOC}, 2"); a("s_add_u32 s49, s49, s31")

def finish_epoch(a):
    a(f"s_mul_i32 s{S_T}, s{S_T}, 1664525")
    a(f"s_add_u32 s{S_T}, s{S_T}, 1013904223")

def phi_many(a, pairs, tmp):
    G = 4
    for g in range(0, len(pairs), G):
        grp = pairs[g:g + G]
        for u in range(0, len(grp), 2):
            sr = grp[u][1]
            assert grp[u + 1][1] == sr + 1 and sr % 2 == 0
            a(f"v_pk_mul_f32 v[{tmp+u}:{tmp+u+1}], v[{sr}:{sr+1}], s[40:41]")
        for u in range(len(grp)): a(f"v_exp_f32 v{tmp+u}, v{tmp+u} clamp")
        for u in range(len(grp)): a(f"v_max_f32 v{tmp+4+u}, 0, v{grp[u][1]}")
        for u in range(0, len(grp), 2):
            a(f"v_pk_add_f32 v[{tmp+u}:{tmp+u+1}], v[{tmp+u}:{tmp+u+1}], s[42:43]")
        for u in range(0, len(grp), 2):
            d = grp[u][0]
            assert grp[u + 1][0] == d + 1 and d % 2 == 0
            a(f"v_pk_add_f32 v[{d}:{d+1}], v[{tmp+u}:{tmp+u+1}], v[{tmp+4+u}:{tmp+5+u}]")

def phi_consts(a):
    a(f"s_mov_b32 s40, {LOG2E:#x}"); a(f"s_mov_b32 s41, {LOG2E:#x}")
    a(f"s_mov_b32 s42, {EPS_1EM6:#x}"); a(f"s_mov_b32 s43, {EPS_1EM6:#x}")

V_XOFF = 2; V_L16 = 3
V_XE = 8; V_XO = 9
V_WA = 10
V_T0 = 12
XF = 20
ACC = 52
WR = 84
TT = 132
TMP = 148
RAW = 20

def p0_ln(a):
    a.comment("---- P0: layernorm of one row per wave ----")
    R0 = RAW
    for i in range(4): a(f"v_mov_b32 v{R0+4+i}, 0")
    a(f"s_lshl_b32 s31, s2, 3")
    a(f"s_add_u32 s31, s31, s3")
    a(f"s_mul_i32 s31, s31, 1152")
    a(f"v_lshlrev_b32 v{V_L16}, 4, v1")
    a(f"buffer_load_dwordx4 v[{R0}:{R0+3}], v{V_L16}, {XS}, s31 offen")
    a("s_mov_b64 exec, 0xff")
    a(f"buffer_load_dwordx4 v[{R0+4}:{R0+7}], v{V_L16}, {XS}, s31 offen offset:1024")
    a("s_mov_b64 exec, -1")
    A = V_T0
    for i in range(4): a(f"v_mov_b32 v{A+i}, 0")
    a(f"s_mov_b32 s32, {ONES_BF16:#x}")
    stamp(a, 1)
    a("s_waitcnt vmcnt(0)")
    stamp(a, 2)
    for i in range(8):
        a(f"v_dot2_f32_bf16 v{A+(i&1)}, v{R0+i}, s32, v{A+(i&1)}")
        a(f"v_dot2_f32_bf16 v{A+2+(i&1)}, v{R0+i}, v{R0+i}, v{A+2+(i&1)}")
    a(f"v_add_f32 v{A}, v{A}, v{A+1}")
    a(f"v_add_f32 v{A+1}, v{A+2}, v{A+3}")
    A1, A2 = A, A + 1
    for mod in ("quad_perm:[1,0,3,2]", "quad_perm:[2,3,0,1]", "row_half_mirror", "row_mirror"):
        a(f"v_add_f32_dpp v{A1}, v{A1}, v{A1} {mod} row_mask:0xf bank_mask:0xf")
        a(f"v_add_f32_dpp v{A2}, v{A2}, v{A2} {mod} row_mask:0xf bank_mask:0xf")
    for sw in ("v_permlane16_swap_b32", "v_permlane32_swap_b32"):
        a(f"v_mov_b32 v{A+2}, v{A1}"); a(f"v_mov_b32 v{A+3}, v{A2}")
        a(f"{sw} v{A1}, v{A+2}"); a(f"{sw} v{A2}, v{A+3}")
        a(f"v_add_f32 v{A1}, v{A1}, v{A+2}"); a(f"v_add_f32 v{A2}, v{A2}, v{A+3}")
    inv = f2u(1.0 / 576)
    a(f"v_mul_f32 v{A1}, {inv:#x}, v{A1}")
    a(f"v_mul_f32 v{A2}, {inv:#x}, v{A2}")
    a(f"v_fma_f32 v{A2}, -v{A1}, v{A1}, v{A2}")
    a(f"v_max_f32 v{A2}, 0, v{A2}")
    a(f"v_add_f32 v{A2}, {EPS_1EM5:#x}, v{A2}")
    a(f"v_rsq_f32 v{A+2}, v{A2}")
    a(f"v_mul_f32 v{A+4}, v{A1}, v{A+2}")
    a(f"v_sub_f32 v{A+4}, 0, v{A+4}")
    a(f"v_mov_b32 v{A+3}, v{A+2}")
    a(f"v_mov_b32 v{A+5}, v{A+4}")
    t = TMP
    for i in range(0, 8, 4):
        for u in range(4):
            r = R0 + i + u
            a(f"v_lshlrev_b32 v{t+2*u}, 16, v{r}")
            a(f"v_and_b32 v{t+2*u+1}, 0xffff0000, v{r}")
        for u in range(4):
            a(f"v_pk_fma_f32 v[{t+2*u}:{t+2*u+1}], v[{t+2*u}:{t+2*u+1}], v[{A+2}:{A+3}], v[{A+4}:{A+5}]")
        for u in range(4):
            a(f"v_cvt_pk_bf16_f32 v{R0+i+u}, v{t+2*u}, v{t+2*u+1}")
    a(f"s_add_u32 s31, s31, {XN:#x}")
    a(f"buffer_store_dwordx4 v[{R0}:{R0+3}], v{V_L16}, {WSR}, s31 offen sc1")
    a("s_mov_b64 exec, 0xff")
    a(f"buffer_store_dwordx4 v[{R0+4}:{R0+7}], v{V_L16}, {WSR}, s31 offen offset:1024 sc1")
    a("s_mov_b64 exec, -1")

def tile_dma_voff(a, vdst, layout, t=V_T0):
    a(f"s_lshl_b32 s31, s3, 6")
    a(f"v_add_u32 v{t}, s31, v1")
    a(f"v_mul_u32_u24 v{t+1}, 911, v{t}")
    a(f"v_lshrrev_b32 v{t+1}, 16, v{t+1}")
    a(f"v_mul_u32_u24 v{t+2}, 72, v{t+1}")
    a(f"v_sub_u32 v{t+2}, v{t}, v{t+2}")
    a(f"v_xor_b32 v{t+2}, v{t+2}, v{t+1}")
    if layout == "row":
        a(f"v_mul_u32_u24 v{t+1}, 1152, v{t+1}")
        a(f"v_lshl_add_u32 v{vdst}, v{t+2}, 4, v{t+1}")
    else:
        a(f"v_mul_u32_u24 v{t+3}, 57, v{t+2}")
        a(f"v_lshrrev_b32 v{t+3}, 10, v{t+3}")
        a(f"v_mul_u32_u24 v{t+4}, 18, v{t+3}")
        a(f"v_sub_u32 v{t+4}, v{t+2}, v{t+4}")
        a(f"v_mul_u32_u24 v{t+1}, 288, v{t+1}")
        a(f"v_lshl_add_u32 v{t+1}, v{t+4}, 4, v{t+1}")
        a(f"s_mov_b32 s31, 589824")
        a(f"v_mul_lo_u32 v{t+3}, v{t+3}, s31")
        a(f"v_add_u32 v{vdst}, v{t+1}, v{t+3}")

def tile_dma(a, vofs, s_src, group_stride, ngroups, lds_base, sc1=True):
    a(f"s_lshl_b32 s31, s3, 10")
    if lds_base: a(f"s_add_u32 s31, s31, {lds_base}")
    for g in range(ngroups):
        a(f"s_mov_b32 m0, s31")
        a(f"s_add_u32 s31, s31, 9216")
        a(f"buffer_load_dwordx4 v{vofs}, {WSR}, s{s_src} offen{' sc1' if sc1 else ''} lds")
        a(f"s_add_u32 s{s_src}, s{s_src}, {group_stride}")

def frag_addrs(a, xe=V_XE, xo=V_XO, base=0, t=V_T0):
    a(f"v_and_b32 v{t}, 15, v1")
    a(f"v_lshrrev_b32 v{t+1}, 4, v1")
    a(f"v_and_b32 v{t+2}, 7, v{t}")
    a(f"v_mul_u32_u24 v{t+3}, 1152, v{t}")
    if base: a(f"v_add_u32 v{t+3}, {base}, v{t+3}")
    a(f"v_xor_b32 v{t+4}, v{t+1}, v{t+2}")
    a(f"v_lshl_add_u32 v{xe}, v{t+4}, 4, v{t+3}")
    a(f"v_or_b32 v{t+4}, 4, v{t+1}")
    a(f"v_xor_b32 v{t+4}, v{t+4}, v{t+2}")
    a(f"v_lshl_add_u32 v{xo}, v{t+4}, 4, v{t+3}")

S_A = 44

S_SO = 45; S_CNT = 47
LFLAG = LDS_MISC
LXCH = LDS_MISC + 64
QSTG = LDS_A1

def p1_wait_p0(a):
    a(f"s_mul_i32 s31, s{S_J}, 18")
    a(f"s_lshl_b32 s32, s{S_RBK}, 3")
    a(f"s_sub_u32 s32, s32, 18")
    a(f"s_add_u32 s33, s{S_J}, {248-26}")
    a(f"v_add_u32 v{V_T0}, s31, v1")
    a(f"v_add_u32 v{V_T0+1}, s32, v1")
    a(f"v_cmp_lt_u32 vcc, 17, v1")
    a(f"v_cndmask_b32 v{V_T0}, v{V_T0}, v{V_T0+1}, vcc")
    a(f"v_add_u32 v{V_T0+1}, s33, v1")
    a(f"v_cmp_lt_u32 vcc, 25, v1")
    a(f"v_cndmask_b32 v{V_T0}, v{V_T0}, v{V_T0+1}, vcc")
    a(f"v_lshlrev_b32 v{V_T0}, 2, v{V_T0}")
    a(f"v_add_u32 v{V_T0}, {F_XN:#x}, v{V_T0}")
    poll_flags(a, V_T0, V_T0 + 1, (1 << 27) - 1, sleep=3)
    stamp(a, 9)

V_TD = 4
def p1_xn_dma(a):
    tile_dma_voff(a, V_TD, "row")
    a(f"s_mul_i32 s33, s{S_RBK}, {64*1152}")
    a(f"s_add_u32 s33, s33, {XN:#x}")
    tile_dma(a, V_TD, 33, 9216, 8, LDS_A0)

def p1_stream_setup(a, first_tile):
    a(f"s_lshl_b32 s31, s{S_J}, 2")
    a(f"s_add_u32 s31, s31, s{S_A}")
    a(f"s_mul_i32 s{S_SO}, s31, {18*4096}")
    a(f"s_add_u32 s{S_SO}, s{S_SO}, {WQP + first_tile*1024:#x}")
    a(f"v_lshlrev_b32 v{V_L16}, 4, v1")

def p1_gemm(a, w_is_A, acc_init):
    p1_xn_dma(a)
    st = Stream(2, 6, WR, V_L16, S_SO, 4096)
    for u in range(6):
        for x in st.loads(u): a(x)
    acc_init(a)
    a("s_waitcnt vmcnt(12)")
    a("s_barrier")
    stamp(a, 4)
    for x in act_reads(XF, 0, 4, V_XE, V_XO, 0): a(x)
    kloop(a, st, 4, XF, V_XE, V_XO, lambda t, rt: ACC + 16 * t + 4 * rt, w_is_A, 3, S_CNT)

def pack_frags(a, src, dst):
    for p in range(2):
        for u in range(2):
            r = src + 4 * (2 * p + u); d = dst + 4 * p + 2 * u
            a(f"v_cvt_pk_bf16_f32 v{d}, v{r}, v{r+1}")
            a(f"v_cvt_pk_bf16_f32 v{d+1}, v{r+2}, v{r+3}")

def odd_masks(a):
    a(f"s_and_b32 s56, s{S_A}, 1")
    a(f"s_sub_u32 s56, 0, s56")
    a(f"s_mov_b32 s57, s56")

def p1_kv(a):
    a.comment("---- P1 KV wave (tiles KM, VM) ----")
    a(f"s_mov_b32 s{S_A}, s3")
    p1_stream_setup(a, 0)
    frag_addrs(a)
    def init(a):
        for r in range(32): a(f"v_mov_b32 v{ACC+r}, 0")
    p1_gemm(a, [False, False], init)
    stamp(a, 5)
    phi_consts(a)
    KM, VM = ACC, ACC + 16
    phi_many(a, [(KM + i, KM + i) for i in range(16)], V_T0)
    KMf, VMf, Lf = XF, XF + 8, XF + 16
    pack_frags(a, KM, KMf); pack_frags(a, VM, VMf)
    T1, T2, T3, T4 = TT, TT + 4, TT + 8, TT + 12
    for p in range(2):
        a(mfma(T1, VMf + 4 * p, KMf + 4 * p, "0" if p == 0 else None))
    a(f"s_lshl_b32 s31, s{S_A}, 2")
    a(f"s_add_u32 s31, s31, {LFLAG}")
    a(f"v_mov_b32 v{V_T0}, s31")
    Lp = a.newlabel("Llf"); Ld = a.newlabel("Llfd")
    a(f"s_mov_b32 s{S_TO}, 0x100000")
    a.label(Lp)
    a(f"ds_read_b32 v{V_T0+1}, v{V_T0}")
    a("s_waitcnt lgkmcnt(0)")
    a(f"v_cmp_ne_u32 vcc, 0, v{V_T0+1}")
    a(f"s_cbranch_vccnz {Ld}")
    a(f"s_sub_u32 s{S_TO}, s{S_TO}, 1")
    a(f"s_cbranch_scc0 {Lp}")
    a.label(Ld)
    a(f"s_lshl_b32 s31, s{S_A}, 11")
    a(f"s_add_u32 s31, s31, {LXCH}")
    a(f"v_add_u32 v{V_T0}, s31, v{V_L16}")
    a(f"ds_read_b128 v[{Lf}:{Lf+3}], v{V_T0}")
    a(f"ds_read_b128 v[{Lf+4}:{Lf+7}], v{V_T0} offset:1024")
    a("s_waitcnt lgkmcnt(0)")
    for p in range(2):
        for (T, A, B) in ((T2, Lf, KMf), (T3, Lf, VMf), (T4, Lf, Lf)):
            a(mfma(T, A + 4 * p, B + 4 * p, "0" if p == 0 else None))
    a(f"s_lshl_b32 s31, s{S_J}, 2")
    a(f"s_add_u32 s31, s31, s{S_A}")
    a(f"s_mul_i32 s31, s31, {KV_HEAD}")
    a(f"s_add_u32 s31, s31, {KV:#x}")
    odd_masks(a)
    a(f"s_and_b64 s[58:59], s[56:57], s[{M_Q1}:{M_Q1+1}]")
    d = V_T0; q = V_T0 + 1; ad = V_T0 + 2; val = V_T0 + 3; ad2 = V_T0 + 4
    a(f"v_and_b32 v{d}, 15, v1")
    a(f"v_lshrrev_b32 v{q}, 4, v1")
    a(f"v_lshlrev_b32 v{ad}, 8, v{q}")
    a(f"v_lshl_add_u32 v{ad}, v{d}, 2, v{ad}")
    for i in range(4):
        a(f"buffer_atomic_add_f32 v{T1+i}, v{ad}, {WSR}, s31 offen offset:{64*i}")
    a(f"v_lshlrev_b32 v{ad}, 6, v{q}")
    a(f"v_add_u32 v{ad}, {16*64-64}, v{ad}")
    a(f"v_lshl_add_u32 v{ad}, v{d}, 2, v{ad}")
    a(f"v_cndmask_b32 v{val}, v{T2}, v{T2+2}, s[58:59]")
    a(f"s_or_b64 s[60:61], s[{M_Q1}:{M_Q1+1}], s[{M_Q3}:{M_Q3+1}]")
    a(f"s_mov_b64 exec, s[60:61]")
    a(f"buffer_atomic_add_f32 v{val}, v{ad}, {WSR}, s31 offen")
    a(f"s_mov_b64 exec, s[{M_Q1}:{M_Q1+1}]")
    a(f"v_cndmask_b32 v{val+2}, v{T2+1}, v{T2+3}, s[56:57]")
    a(f"buffer_atomic_add_f32 v{val+2}, v{ad}, {WSR}, s31 offen offset:64")
    a(f"s_mov_b64 exec, s[{M_Q0}:{M_Q0+1}]")
    a(f"v_lshlrev_b32 v{ad2}, 2, v{d}")
    a(f"v_cndmask_b32 v{val+3}, v{T3}, v{T3+2}, s[56:57]")
    a(f"v_cndmask_b32 v{val+4}, v{T3+1}, v{T3+3}, s[56:57]")
    a(f"buffer_atomic_add_f32 v{val+3}, v{ad2}, {WSR}, s31 offen offset:1280")
    a(f"buffer_atomic_add_f32 v{val+4}, v{ad2}, {WSR}, s31 offen offset:{1280+128}")
    a(f"s_mov_b64 exec, -1")
    a(f"s_and_b32 s52, s{S_A}, 1")
    a(f"s_lshl_b32 s52, s52, 1")
    a(f"s_lshl_b32 s53, 0x00030003, s52")
    a(f"s_mov_b32 s62, s53"); a(f"s_mov_b32 s63, s53")
    a(f"v_subrev_u32 v{ad2}, s52, v{d}")
    a(f"v_lshlrev_b32 v{ad2}, 7, v{ad2}")
    a(f"v_lshl_add_u32 v{ad2}, v{q}, 2, v{ad2}")
    a(f"v_add_u32 v{ad2}, {1280 + 64 - 4}, v{ad2}")
    a(f"v_cndmask_b32 v{TMP}, v{T4}, v{T4+2}, s[58:59]")
    a(f"v_cndmask_b32 v{TMP+1}, v{T4+1}, v{T4+3}, s[56:57]")
    a(f"s_and_b64 exec, s[60:61], s[62:63]")
    a(f"buffer_atomic_add_f32 v{TMP}, v{ad2}, {WSR}, s31 offen")
    a(f"s_and_b64 exec, s[{M_Q1}:{M_Q1+1}], s[62:63]")
    a(f"buffer_atomic_add_f32 v{TMP+1}, v{ad2}, {WSR}, s31 offen offset:4")
    a(f"s_mov_b64 exec, -1")

def p1_q(a):
    a.comment("---- P1 Q wave (tiles QM [W as A], L [x as A]) ----")
    a(f"s_sub_u32 s{S_A}, s3, 4")
    p1_stream_setup(a, 2)
    frag_addrs(a)
    def init(a):
        for r in range(16): a(f"v_mov_b32 v{ACC+r}, 0")
        a(f"s_mov_b32 s52, 0x10001000"); a(f"s_mov_b32 s53, 0x10001000")
        a(f"v_cndmask_b32 v{ACC+16}, 0, 1.0, s[52:53]")
        for r in range(1, 16): a(f"v_mov_b32 v{ACC+16+r}, v{ACC+16}")
    a("s_setprio 1")
    p1_gemm(a, [True, False], init)
    stamp(a, 5)
    phi_consts(a)
    QM, LL = ACC, ACC + 16
    PH = WR
    phi_many(a, [(PH + i, LL + i) for i in range(16)], V_T0)
    a(f"s_mov_b32 s52, 0x0f0f0f0f"); a(f"s_mov_b32 s53, 0x0f0f0f0f")
    for i in range(16):
        a(f"v_cndmask_b32 v{LL+i}, v{LL+i}, v{PH+i}, s[52:53]")
    Lf = XF
    pack_frags(a, LL, Lf)
    a(f"s_lshl_b32 s31, s{S_A}, 11")
    a(f"s_add_u32 s31, s31, {LXCH}")
    a(f"v_add_u32 v{V_T0}, s31, v{V_L16}")
    a(f"ds_write_b128 v{V_T0}, v[{Lf}:{Lf+3}]")
    a(f"ds_write_b128 v{V_T0}, v[{Lf+4}:{Lf+7}] offset:1024")
    a(f"s_lshl_b32 s31, s{S_A}, 2")
    a(f"s_add_u32 s31, s31, {LFLAG}")
    a(f"v_mov_b32 v{V_T0+1}, s31")
    a(f"v_mov_b32 v{V_T0+2}, 1")
    a("s_waitcnt lgkmcnt(0)")
    a(f"ds_write_b32 v{V_T0+1}, v{V_T0+2}")
    phi_many(a, [(QM + i, QM + i) for i in range(16)], V_T0 + 0)
    P = XF + 8
    for rt in range(4):
        a(f"v_cvt_pk_bf16_f32 v{P+2*rt}, v{QM+4*rt}, v{QM+4*rt+1}")
        a(f"v_cvt_pk_bf16_f32 v{P+2*rt+1}, v{QM+4*rt+2}, v{QM+4*rt+3}")
    a(f"s_mul_i32 s32, s{S_A}, 2304")
    a(f"s_add_u32 s32, s32, {QSTG}")
    a(f"v_and_b32 v{V_T0}, 15, v1")
    a(f"v_lshrrev_b32 v{V_T0+1}, 4, v1")
    a(f"v_mul_u32_u24 v{V_T0+2}, 36, v{V_T0}")
    a(f"v_add_u32 v{V_T0+2}, s32, v{V_T0+2}")
    a(f"v_lshl_add_u32 v{V_T0+2}, v{V_T0+1}, 3, v{V_T0+2}")
    a(f"v_add_u32 v{V_T0+3}, 1152, v{V_T0+2}")
    for rt in range(4):
        ad = V_T0 + 2 + (rt >> 1); o = 144 * (rt & 1)
        a(f"ds_write2_b32 v{ad}, v{P+2*rt}, v{P+2*rt+1} offset0:{o} offset1:{o+1}")
    a(f"s_and_b32 s52, s{S_A}, 1")
    a(f"s_lshl_b32 s52, s52, 1")
    a(f"s_lshl_b32 s53, 0x03000300, s52")
    a(f"s_mov_b32 s62, s53"); a(f"s_mov_b32 s63, s53")
    a(f"s_add_u32 s52, s52, 8")
    a(f"v_subrev_u32 v{V_T0+4}, s52, v{V_T0}")
    a(f"v_lshlrev_b32 v{V_T0+4}, 1, v{V_T0+4}")
    a(f"v_mul_u32_u24 v{V_T0+5}, 144, v{V_T0+1}")
    a(f"v_add3_u32 v{V_T0+4}, v{V_T0+4}, v{V_T0+5}, s32")
    a(f"s_mov_b64 exec, s[62:63]")
    for rt in range(4):
        for h in range(2):
            r = Lf + 2 * rt + h
            o = 576 * rt + 72 * h + 32
            a(f"ds_write_b16 v{V_T0+4}, v{r} offset:{o}")
            a(f"ds_write_b16_d16_hi v{V_T0+4}, v{r} offset:{o+36}")
    a("s_mov_b64 exec, -1")
    a(f"v_add_u32 v{V_T0+5}, s32, v{V_L16}")
    a("s_waitcnt lgkmcnt(0)")
    for i in range(3):
        a(f"ds_read_b128 v[{WR+4*i}:{WR+4*i+3}], v{V_T0+5} offset:{1024*i}")
    a(f"s_lshl_b32 s31, s{S_J}, 2")
    a(f"s_add_u32 s31, s31, s{S_A}")
    a(f"s_mul_i32 s31, s31, 73728")
    a(f"s_mul_i32 s32, s{S_RBK}, 2304")
    a(f"s_add_u32 s31, s31, s32")
    a(f"s_add_u32 s31, s31, {PQ:#x}")
    a("s_waitcnt lgkmcnt(0)")
    for i in range(2):
        a(f"buffer_store_dwordx4 v[{WR+4*i}:{WR+4*i+3}], v{V_L16}, {WSR}, s31 offen offset:{1024*i} sc1")
    a(f"s_mov_b64 exec, s[{M_Q0}:{M_Q0+1}]")
    a(f"buffer_store_dwordx4 v[{WR+8}:{WR+11}], v{V_L16}, {WSR}, s31 offen offset:2048 sc1")
    a("s_mov_b64 exec, -1")
```

```python
import sys
sys.path.insert(0, "gen")
from common import *
import common, p1, helpers, mid, mlp
from common import stamp, stamp_dump
from gemm import *

def if_wave(a, cond, val, label_else):
    a(f"s_cmp_{cond}_u32 s3, {val}")
    a(f"s_cbranch_scc0 {label_else}")

def phases_mid(a, stop_after):
    M = mid
    M.mid_mapping(a)
    a(f"v_lshlrev_b32 v{p1.V_L16}, 4, v1")
    M.ep_addrs(a)
    p1.tile_dma_voff(a, M.V_TD, "s4")
    a("s_cmp_lt_u32 s3, 9"); a("s_cbranch_scc1 L_p2_nj")
    a("s_cmp_eq_u32 s3, 11"); a("s_cbranch_scc1 L_p2_w11")
    a("s_cmp_eq_u32 s3, 10"); a("s_cbranch_scc1 L_p2_j4")
    helpers.job_setup_big(a, 3, M.L_JOB)
    a("s_branch L_p2_jl")
    a.label("L_p2_j4")
    helpers.job_setup_big(a, 4, M.L_JOB + 4608)
    a.label("L_p2_jl")
    a(f"s_cmp_eq_u32 s{helpers.S_ACT}, 0"); a("s_cbranch_scc1 L_p2_nj")
    helpers.job_loads(a)
    a("s_branch L_p2_nj")
    a.label("L_p2_w11")
    M.zero_stats(a)
    a("s_waitcnt lgkmcnt(0)")
    a.label("L_p2_nj")
    a("s_cmp_eq_u32 s3, 0"); a("s_cbranch_scc0 L_p2_np")
    a(f"v_lshlrev_b32 v12, 4, v1")
    a(f"v_add_u32 v12, {F_P1:#x}, v12")
    poll_flags(a, 12, 16, 0xffffffff, 0xffffffff, ndw=4)
    a("s_cmp_eq_u32 s2, 0"); a("s_cbranch_scc0 L_p2_np")
    a("s_mov_b32 s31, 0")
    set_flag(a, WS_EPOCH, 31, 12, 13)
    a.label("L_p2_np")
    stamp(a, 10)
    a("s_barrier")
    a("s_cmp_ge_u32 s3, 9"); a("s_cbranch_scc1 L_p2_b")
    a("s_cmp_eq_u32 s3, 8"); a("s_cbranch_scc1 L_p2_w8")
    M.p2_ostage(a)
    M.w_loads(a, 0, list(range(9)))
    M.p2_ostage_compute(a, 9)
    M.w_loads(a, 0, list(range(9, 18)))
    M.xres_loads(a, p1.XS, None, M.XR)
    a("s_waitcnt lgkmcnt(0)")
    a("s_branch L_p2_b")
    a.label("L_p2_w8")
    M.w_loads(a, 0, list(range(9)))
    M.w_loads(a, 0, list(range(9, 18)))
    M.xres_loads(a, p1.XS, None, M.XR)
    a.label("L_p2_b")
    stamp(a, 11)
    a("s_barrier")
    a("s_cmp_ge_u32 s3, 9"); a("s_cbranch_scc1 L_p2_h")
    a("s_waitcnt vmcnt(0)")
    M.small_gemm(a)
    M.p2_epilogue(a)
    a("s_waitcnt lgkmcnt(0)")
    a("s_branch L_p2_c")
    a.label("L_p2_h")
    a("s_cmp_eq_u32 s3, 11"); a("s_cbranch_scc1 L_p2_c")
    a(f"s_cmp_eq_u32 s{helpers.S_ACT}, 0"); a("s_cbranch_scc1 L_p2_c")
    helpers.job_run(a)
    a.label("L_p2_c")
    stamp(a, 12)
    a("s_barrier")
    M.coop_store(a, M.L_HS, HB, HSTAT)
    a("s_cmp_ge_u32 s3, 9"); a("s_cbranch_scc1 L_p2_d")
    M.w_loads(a, 1, list(range(18)))
    M.c1_loads(a)
    a.label("L_p2_d")
    a("s_waitcnt vmcnt(0)")
    a("s_barrier")
    a("s_cmp_eq_u32 s3, 0"); a("s_cbranch_scc0 L_p2_f")
    M.flag_idx128(a, F_P2)
    a("s_lshl_b32 s31, s2, 2")
    set_flag(a, F_PK, 31, 12, 13)
    a.label("L_p2_f")
    stamp(a, 13)
    if stop_after == "P2": return
    a("s_cmp_eq_u32 s3, 0"); a("s_cbranch_scc0 L_p2b_np")
    a(f"s_lshl_b32 s31, s{M.S_RB32}, 9")
    a(f"s_add_u32 s31, s31, {F_P2:#x}")
    a(f"v_lshlrev_b32 v12, 7, v1")
    a(f"v_add_u32 v12, s31, v12")
    poll_flags(a, 12, 13, 0xf)
    a.label("L_p2b_np")
    a("s_cmp_eq_u32 s3, 11"); a("s_cbranch_scc0 L_p2b_nz")
    M.zero_stats(a)
    a("s_waitcnt lgkmcnt(0)")
    a.label("L_p2b_nz")
    a("s_barrier")
    a("s_cmp_ge_u32 s3, 9"); a("s_cbranch_scc1 L_p2b_b")
    a(f"s_mul_i32 s33, s{M.S_RB32}, 9216")
    a(f"s_add_u32 s33, s33, {HB:#x}")
    p1.tile_dma(a, M.V_TD, 33, 2304, 4, M.L_TILE)
    M.row_stats_loads(a, HSTAT, M.AF)
    M.c1_sum(a)
    a("s_waitcnt vmcnt(0)")
    M.stats_finish(a, M.AF, True)
    a.label("L_p2b_b")
    a("s_barrier")
    a("s_cmp_ge_u32 s3, 9"); a("s_cbranch_scc1 L_p2b_c")
    M.small_gemm(a)
    M.p2b_epilogue(a)
    a("s_waitcnt lgkmcnt(0)")
    a.label("L_p2b_c")
    a("s_barrier")
    M.coop_store(a, M.L_STG, HH, None)
    a("s_cmp_ge_u32 s3, 9"); a("s_cbranch_scc1 L_p2b_d")
    M.w_loads(a, 2, list(range(18)))
    a.label("L_p2b_d")
    a("s_waitcnt vmcnt(0)")
    a("s_barrier")
    a("s_cmp_eq_u32 s3, 0"); a("s_cbranch_scc0 L_p2b_f")
    M.flag_idx128(a, F_P2B)
    a.label("L_p2b_f")
    stamp(a, 14)
    if stop_after == "P2B": return
    a("s_cmp_eq_u32 s3, 0"); a("s_cbranch_scc0 L_p3_np")
    a(f"s_lshl_b32 s31, s{M.S_RB32}, 2")
    a(f"s_sub_u32 s31, s31, 4")
    a(f"v_add_u32 v12, s31, v1")
    a(f"v_max_i32 v12, 0, v12")
    a(f"v_min_i32 v12, 255, v12")
    a(f"v_lshlrev_b32 v12, 7, v12")
    a(f"v_add_u32 v12, {F_P2B:#x}, v12")
    poll_flags(a, 12, 13, 0xfff)
    a.label("L_p3_np")
    a("s_barrier")
    a("s_cmp_ge_u32 s3, 9"); a("s_cbranch_scc1 L_p3_b")
    M.p3_tile_dma(a)
    a("s_waitcnt vmcnt(0)")
    a.label("L_p3_b")
    a("s_barrier")
    a("s_cmp_ge_u32 s3, 9"); a("s_cbranch_scc1 L_p3_c")
    M.small_gemm(a)
    M.p3_epilogue(a)
    a("s_waitcnt lgkmcnt(0)")
    a.label("L_p3_c")
    a("s_barrier")
    M.coop_store(a, M.L_STG, X1, X1STAT)
    a("s_waitcnt vmcnt(0)")
    a("s_barrier")
    a("s_cmp_eq_u32 s3, 0"); a("s_cbranch_scc0 L_p3_f")
    M.flag_idx128(a, F_P3)
    a.label("L_p3_f")
    stamp(a, 15)
    if stop_after == "P3": return
    phase_mlp(a)

def phase_mlp(a):
    Q = mlp
    Q.mlp_prologue(a)
    st = Stream(3, Q.DEPTH, Q.WR, p1.V_L16, Q.S_SO, 3072)
    a("s_cmp_eq_u32 s3, 0"); a("s_cbranch_scc0 L_m_np")
    a(f"v_lshlrev_b32 v12, 4, v1")
    a(f"v_add_u32 v12, {F_PK:#x}, v12")
    poll_flags(a, 12, 16, 0xffffffff, 0xffffffff, ndw=4)
    a(f"s_lshl_b32 s31, s{Q.S_RB}, 10")
    a(f"s_add_u32 s31, s31, {F_P3:#x}")
    a(f"v_lshlrev_b32 v12, 7, v1")
    a(f"v_add_u32 v12, s31, v12")
    poll_flags(a, 12, 13, 0xff)
    a.label("L_m_np")
    a("s_barrier")
    a("s_cmp_ge_u32 s3, 9"); a("s_cbranch_scc1 L_m_nd")
    a(f"s_mul_i32 s33, s{Q.S_RB}, {64*288}")
    a(f"s_add_u32 s33, s33, {X1:#x}")
    p1.tile_dma(a, Q.V_TD, 33, 2304, 8, Q.L_X1)
    a.label("L_m_nd")
    a("s_cmp_eq_u32 s3, 11"); a("s_cbranch_scc0 L_m_ns")
    Q.row_stats(a)
    a("s_waitcnt vmcnt(0)")
    Q.row_stats_finish(a)
    a.label("L_m_ns")
    Q.c3_loads(a)
    for u in range(Q.DEPTH):
        for x in st.loads(u): a(x)
    a(f"s_waitcnt vmcnt({3*Q.DEPTH}) lgkmcnt(0)")
    Q.c3_sum(a)
    for r in range(48): a(f"v_mov_b32 v{Q.ACC+r}, 0")
    a("s_barrier")
    stamp(a, 1)
    acc_of = lambda t, rt: Q.ACC + 16 * t + 4 * rt
    for x in act_reads(Q.XF, 0, 4, p1.V_XE, p1.V_XO, 0): a(x)
    gemm_stream(a, st, Q, first=True)
    stamp(a, 2)
    Q.gemm1_epilogue(a)
    a("s_waitcnt lgkmcnt(0)")
    a("s_barrier")
    stamp(a, 3)
    p1.frag_addrs(a, p1.V_XE, p1.V_XO, Q.L_G)
    for r in range(48): a(f"v_mov_b32 v{Q.ACC+r}, 0")
    for x in act_reads(Q.XF, 0, 4, p1.V_XE, p1.V_XO, 0): a(x)
    gemm_stream(a, st, Q, first=False)
    stamp(a, 4)
    Q.gemm2_epilogue(a)
    a("s_waitcnt lgkmcnt(0)")
    a("s_barrier")
    Q.part_store(a)
    a("s_waitcnt vmcnt(0)")
    a("s_barrier")
    stamp(a, 5)
    a("s_cmp_eq_u32 s3, 0"); a("s_cbranch_scc0 L_m_nf")
    a(f"s_lshl_b32 s31, s{Q.S_RB}, 3")
    a(f"s_add_u32 s31, s31, s{Q.S_J8}")
    a("s_lshl_b32 s31, s31, 7")
    set_flag(a, F_MLP, 31, 12, 13)
    a(f"s_lshl_b32 s31, s{Q.S_RB}, 10")
    a(f"s_add_u32 s31, s31, {F_MLP:#x}")
    a(f"v_lshlrev_b32 v12, 7, v1")
    a(f"v_add_u32 v12, s31, v12")
    poll_flags(a, 12, 13, 0xff)
    a.label("L_m_nf")
    a("s_barrier")
    stamp(a, 6)
    Q.final_reduce(a)
    stamp(a, 7)

def gemm_stream(a, st, Q, first):
    D, NB, NR = st.D, st.NB, 4
    base = 0 if first else 18
    acc_of = lambda t, rt: Q.ACC + 16 * t + 4 * rt
    def step(n, ks, looped_u=None):
        slot = n % D
        cur = ks & 1; nxt = 1 - cur
        mf = []
        for rt in range(NR):
            for t in range(NB):
                x = Q.XF + 4 * (cur * NR + rt); w = st.reg(slot, t)
                mf.append(mfma(acc_of(t, rt), w, x))
        remaining = 36 - (n + 1)
        inflight_after = min(D - 1, remaining)
        a(f"s_waitcnt vmcnt({inflight_after*NB}) lgkmcnt(0)")
        return mf, slot, nxt
    for ks in range(18):
        n = base + ks
        mf, slot, nxt = step(n, ks)
        if ks < 17:
            bse = p1.V_XO if (ks + 1) & 1 else p1.V_XE
            rd = [f"ds_read_b128 v[{Q.XF+4*(nxt*NR+rt)}:{Q.XF+4*(nxt*NR+rt)+3}], v{bse} offset:{rt*18432 + ((ks+1)>>1)*128}" for rt in range(NR)]
        else: rd = []
        interleave(a, mf, rd, lead=1, per=2)
        if n + D < 36:
            if n + D == 18:
                a(f"s_add_u32 s{st.soff}, s{st.soff}, {W4P - W3P - 18*3072:#x}")
            for x in st.loads(slot): a(x)

def build(stop_after="P1"):
    a = Asm()
    K = NAME + "_kernel"
    a.label(K)
    p1.prologue(a)
    if common.STAMP_ON:
        for i in range(16): a(f"s_mov_b32 s{74+i}, 0")
    stamp(a, 0)
    a("s_cmp_ge_u32 s3, 8")
    a("s_cbranch_scc1 L_p0_help")
    p1.p0_ln(a)
    a("s_barrier")
    a("s_waitcnt vmcnt(0) lgkmcnt(0)")
    p1.finish_epoch(a)
    stamp(a, 3)
    a("s_barrier")
    a("s_cmp_eq_u32 s3, 0")
    a("s_cbranch_scc0 L_p0_nf")
    a("s_lshl_b32 s31, s2, 2")
    set_flag(a, F_XN, 31)
    p1.p1_wait_p0(a)
    a.label("L_p0_nf")
    a("s_barrier")
    a("s_cmp_ge_u32 s3, 4")
    a("s_cbranch_scc1 L_p1_q")
    p1.p1_kv(a)
    stamp(a, 6)
    a("s_branch L_p1_end")
    a.label("L_p1_q")
    p1.p1_q(a)
    a("s_setprio 0")
    stamp(a, 6)
    a("s_branch L_p1_end")
    a.label("L_p0_help")
    a(f"v_lshlrev_b32 v12, 2, v1")
    a(f"v_add_u32 v12, {p1.LFLAG}, v12")
    a("v_mov_b32 v13, 0")
    a("s_mov_b64 exec, 0xf")
    a("ds_write_b32 v12, v13")
    a("s_mov_b64 exec, -1")
    a("s_cmp_ge_u32 s2, 144")
    a("s_cbranch_scc1 L_p0_small")
    helpers.p0_issue(a)
    a("s_waitcnt lgkmcnt(0)")
    p1.finish_epoch(a)
    a("s_barrier")
    helpers.p0_finish(a)
    a("s_barrier")
    a("s_barrier")
    a("s_branch L_p1_h")
    a.label("L_p0_small")
    a("s_waitcnt lgkmcnt(0)")
    p1.finish_epoch(a)
    a("s_cmp_eq_u32 s3, 9")
    a("s_cbranch_scc1 L_p0_s9")
    a("s_cmp_ge_u32 s3, 10")
    a("s_cbranch_scc0 L_p0_idle")
    helpers.code_prefetch(a, K, "L_code_end")
    a("s_cmp_eq_u32 s3, 10")
    a("s_cbranch_scc0 L_p0_idle")
    helpers.zero_kv(a)
    a("s_branch L_p0_idle")
    a.label("L_p0_s9")
    helpers.job_setup_small(a, LDS_A1 + 40960)
    a(f"s_cmp_eq_u32 s{helpers.S_ACT}, 0")
    a("s_cbranch_scc1 L_p0_idle")
    helpers.job_loads(a)
    a("s_barrier"); a("s_barrier"); a("s_barrier")
    helpers.job_run(a)
    stamp(a, 6)
    a("s_branch L_p1_h")
    a.label("L_p0_idle")
    a("s_barrier"); a("s_barrier"); a("s_barrier")
    a.label("L_p1_h")
    a("s_cmp_eq_u32 s3, 8")
    a("s_cbranch_scc0 L_p1_hb")
    p1.p1_mapping(a)
    p1.p1_xn_dma(a)
    a("s_waitcnt vmcnt(0)")
    a.label("L_p1_hb")
    a("s_barrier")
    a.label("L_p1_end")
    a("s_waitcnt vmcnt(0) lgkmcnt(0)")
    stamp(a, 7)
    a("s_barrier")
    stamp(a, 8)
    a("s_cmp_eq_u32 s3, 0")
    a("s_cbranch_scc0 L_p1_flagged")
    a("s_lshl_b32 s31, s2, 2")
    set_flag(a, F_P1, 31)
    a.label("L_p1_flagged")
    if stop_after != "P1":
        phases_mid(a, stop_after)
    stamp_dump(a)
    a.label("L_exit")
    a("s_endpgm")
    a.label("L_code_end")
    n = a.fix_hazards()
    errs = a.check_waits([K])
    for e in errs: print("WAITCHECK:", e)
    hdr = open("cdna_kernels/" + NAME + ".s.ref").read().split("; Override launch")[0]
    txt = hdr + "; @launch grid=(256,1,1) block=(768,1,1) lds=163840\n"
    txt += '.amdgcn_target "amdgcn-amd-amdhsa--gfx950"\n.text\n'
    txt += f".globl {K}\n.p2align 8\n.type {K},@function\n"
    txt += a.text()
    txt += f""".section .rodata,"a"
.p2align 6
.amdhsa_kernel {K}
  .amdhsa_next_free_vgpr 168
  .amdhsa_next_free_sgpr 96
  .amdhsa_accum_offset 168
  .amdhsa_group_segment_fixed_size 0
  .amdhsa_kernarg_size 88
  .amdhsa_user_sgpr_count 2
  .amdhsa_user_sgpr_kernarg_segment_ptr 1
  .amdhsa_system_sgpr_workgroup_id_x 1
  .amdhsa_float_denorm_mode_32 3
.end_amdhsa_kernel
"""
    return txt, n

if __name__ == "__main__":
    if "--stamp" in sys.argv:
        common.STAMP_ON = True; sys.argv.remove("--stamp")
    stop = sys.argv[1] if len(sys.argv) > 1 else "P1"
    out = sys.argv[2] if len(sys.argv) > 2 else "k.s"
    txt, n = build(stop)
    open(out, "w").write(txt)
    print("nops inserted:", n, "bytes:", len(txt))
```

```python
import sys
sys.path.insert(0, "gen")
from common import *
import common, p1, helpers, mid, mlp
from common import stamp, stamp_dump
from gemm import *

def if_wave(a, cond, val, label_else):
    a(f"s_cmp_{cond}_u32 s3, {val}")
    a(f"s_cbranch_scc0 {label_else}")

def phases_mid(a, stop_after):
    M = mid
    M.mid_mapping(a)
    a(f"v_lshlrev_b32 v{p1.V_L16}, 4, v1")
    M.ep_addrs(a)
    p1.tile_dma_voff(a, M.V_TD, "s4")
    a("s_cmp_lt_u32 s3, 9"); a("s_cbranch_scc1 L_p2_nj")
    a("s_cmp_eq_u32 s3, 11"); a("s_cbranch_scc1 L_p2_w11")
    a("s_cmp_eq_u32 s3, 10"); a("s_cbranch_scc1 L_p2_j4")
    helpers.job_setup_big(a, 3, M.L_JOB)
    a("s_branch L_p2_jl")
    a.label("L_p2_j4")
    helpers.job_setup_big(a, 4, M.L_JOB + 4608)
    a.label("L_p2_jl")
    a(f"s_cmp_eq_u32 s{helpers.S_ACT}, 0"); a("s_cbranch_scc1 L_p2_nj")
    helpers.job_loads(a)
    a("s_branch L_p2_nj")
    a.label("L_p2_w11")
    M.zero_stats(a)
    a("s_waitcnt lgkmcnt(0)")
    a.label("L_p2_nj")
    a("s_cmp_eq_u32 s3, 0"); a("s_cbranch_scc0 L_p2_np")
    a(f"v_lshlrev_b32 v12, 4, v1")
    a(f"v_add_u32 v12, {F_P1:#x}, v12")
    poll_flags(a, 12, 16, 0xffffffff, 0xffffffff, ndw=4)
    a("s_cmp_eq_u32 s2, 0"); a("s_cbranch_scc0 L_p2_np")
    a("s_mov_b32 s31, 0")
    set_flag(a, WS_EPOCH, 31, 12, 13)
    a.label("L_p2_np")
    stamp(a, 10)
    a("s_barrier")
    a("s_cmp_ge_u32 s3, 9"); a("s_cbranch_scc1 L_p2_b")
    a("s_cmp_eq_u32 s3, 8"); a("s_cbranch_scc1 L_p2_w8")
    M.p2_ostage(a)
    M.w_loads(a, 0, list(range(9)))
    M.p2_ostage_compute(a, 9)
    M.w_loads(a, 0, list(range(9, 18)))
    M.xres_loads(a, p1.XS, None, M.XR)
    a("s_waitcnt lgkmcnt(0)")
    a("s_branch L_p2_b")
    a.label("L_p2_w8")
    M.w_loads(a, 0, list(range(9)))
    M.w_loads(a, 0, list(range(9, 18)))
    M.xres_loads(a, p1.XS, None, M.XR)
    a.label("L_p2_b")
    stamp(a, 11)
    a("s_barrier")
    a("s_cmp_ge_u32 s3, 9"); a("s_cbranch_scc1 L_p2_h")
    a("s_waitcnt vmcnt(0)")
    M.small_gemm(a)
    M.p2_epilogue(a)
    a("s_waitcnt lgkmcnt(0)")
    a("s_branch L_p2_c")
    a.label("L_p2_h")
    a("s_cmp_eq_u32 s3, 11"); a("s_cbranch_scc1 L_p2_c")
    a(f"s_cmp_eq_u32 s{helpers.S_ACT}, 0"); a("s_cbranch_scc1 L_p2_c")
    helpers.job_run(a)
    a.label("L_p2_c")
    stamp(a, 12)
    a("s_barrier")
    M.coop_store(a, M.L_HS, HB, HSTAT)
    a("s_cmp_ge_u32 s3, 9"); a("s_cbranch_scc1 L_p2_d")
    M.w_loads(a, 1, list(range(18)))
    M.c1_loads(a)
    a.label("L_p2_d")
    a("s_waitcnt vmcnt(0)")
    a("s_barrier")
    a("s_cmp_eq_u32 s3, 0"); a("s_cbranch_scc0 L_p2_f")
    M.flag_idx128(a, F_P2)
    a("s_lshl_b32 s31, s2, 2")
    set_flag(a, F_PK, 31, 12, 13)
    a.label("L_p2_f")
    stamp(a, 13)
    if stop_after == "P2": return
    a("s_cmp_eq_u32 s3, 0"); a("s_cbranch_scc0 L_p2b_np")
    a(f"s_lshl_b32 s31, s{M.S_RB32}, 9")
    a(f"s_add_u32 s31, s31, {F_P2:#x}")
    a(f"v_lshlrev_b32 v12, 7, v1")
    a(f"v_add_u32 v12, s31, v12")
    poll_flags(a, 12, 13, 0xf)
    a.label("L_p2b_np")
    a("s_cmp_eq_u32 s3, 11"); a("s_cbranch_scc0 L_p2b_nz")
    M.zero_stats(a)
    a("s_waitcnt lgkmcnt(0)")
    a.label("L_p2b_nz")
    a("s_barrier")
    a("s_cmp_ge_u32 s3, 9"); a("s_cbranch_scc1 L_p2b_b")
    a(f"s_mul_i32 s33, s{M.S_RB32}, 9216")
    a(f"s_add_u32 s33, s33, {HB:#x}")
    p1.tile_dma(a, M.V_TD, 33, 2304, 4, M.L_TILE)
    M.row_stats_loads(a, HSTAT, M.AF)
    M.c1_sum(a)
    a("s_waitcnt vmcnt(0)")
    M.stats_finish(a, M.AF, True)
    a.label("L_p2b_b")
    a("s_barrier")
    a("s_cmp_ge_u32 s3, 9"); a("s_cbranch_scc1 L_p2b_c")
    M.small_gemm(a)
    M.p2b_epilogue(a)
    a("s_waitcnt lgkmcnt(0)")
    a.label("L_p2b_c")
    a("s_barrier")
    M.coop_store(a, M.L_STG, HH, None)
    a("s_cmp_ge_u32 s3, 9"); a("s_cbranch_scc1 L_p2b_d")
    M.w_loads(a, 2, list(range(18)))
    a.label("L_p2b_d")
    a("s_waitcnt vmcnt(0)")
    a("s_barrier")
    a("s_cmp_eq_u32 s3, 0"); a("s_cbranch_scc0 L_p2b_f")
    M.flag_idx128(a, F_P2B)
    a.label("L_p2b_f")
    stamp(a, 14)
    if stop_after == "P2B": return
    a("s_cmp_eq_u32 s3, 0"); a("s_cbranch_scc0 L_p3_np")
    a(f"s_lshl_b32 s31, s{M.S_RB32}, 2")
    a(f"s_sub_u32 s31, s31, 4")
    a(f"v_add_u32 v12, s31, v1")
    a(f"v_max_i32 v12, 0, v12")
    a(f"v_min_i32 v12, 255, v12")
    a(f"v_lshlrev_b32 v12, 7, v12")
    a(f"v_add_u32 v12, {F_P2B:#x}, v12")
    poll_flags(a, 12, 13, 0xfff)
    a.label("L_p3_np")
    a("s_barrier")
    a("s_cmp_ge_u32 s3, 9"); a("s_cbranch_scc1 L_p3_b")
    M.p3_tile_dma(a)
    a("s_waitcnt vmcnt(0)")
    a.label("L_p3_b")
    a("s_barrier")
    a("s_cmp_ge_u32 s3, 9"); a("s_cbranch_scc1 L_p3_c")
    M.small_gemm(a)
    M.p3_epilogue(a)
    a("s_waitcnt lgkmcnt(0)")
    a.label("L_p3_c")
    a("s_barrier")
    M.coop_store(a, M.L_STG, X1, X1STAT)
    a("s_waitcnt vmcnt(0)")
    a("s_barrier")
    a("s_cmp_eq_u32 s3, 0"); a("s_cbranch_scc0 L_p3_f")
    M.flag_idx128(a, F_P3)
    a.label("L_p3_f")
    stamp(a, 15)
    if stop_after == "P3": return
    phase_mlp(a)

def phase_mlp(a):
    Q = mlp
    Q.mlp_prologue(a)
    st = Stream(3, Q.DEPTH, Q.WR, p1.V_L16, Q.S_SO, 3072)
    a("s_cmp_eq_u32 s3, 0"); a("s_cbranch_scc0 L_m_np")
    a(f"v_lshlrev_b32 v12, 4, v1")
    a(f"v_add_u32 v12, {F_PK:#x}, v12")
    poll_flags(a, 12, 16, 0xffffffff, 0xffffffff, ndw=4)
    a(f"s_lshl_b32 s31, s{Q.S_RB}, 10")
    a(f"s_add_u32 s31, s31, {F_P3:#x}")
    a(f"v_lshlrev_b32 v12, 7, v1")
    a(f"v_add_u32 v12, s31, v12")
    poll_flags(a, 12, 13, 0xff)
    a.label("L_m_np")
    a("s_barrier")
    a("s_cmp_ge_u32 s3, 9"); a("s_cbranch_scc1 L_m_nd")
    a(f"s_mul_i32 s33, s{Q.S_RB}, {64*288}")
    a(f"s_add_u32 s33, s33, {X1:#x}")
    p1.tile_dma(a, Q.V_TD, 33, 2304, 8, Q.L_X1)
    a.label("L_m_nd")
    a("s_cmp_eq_u32 s3, 11"); a("s_cbranch_scc0 L_m_ns")
    Q.row_stats(a)
    a("s_waitcnt vmcnt(0)")
    Q.row_stats_finish(a)
    a.label("L_m_ns")
    Q.c3_loads(a)
    for u in range(Q.DEPTH):
        for x in st.loads(u): a(x)
    a(f"s_waitcnt vmcnt({3*Q.DEPTH}) lgkmcnt(0)")
    Q.c3_sum(a)
    for r in range(48): a(f"v_mov_b32 v{Q.ACC+r}, 0")
    a("s_barrier")
    stamp(a, 1)
    acc_of = lambda t, rt: Q.ACC + 16 * t + 4 * rt
    for x in act_reads(Q.XF, 0, 4, p1.V_XE, p1.V_XO, 0): a(x)
    gemm_stream(a, st, Q, first=True)
    stamp(a, 2)
    Q.gemm1_epilogue(a)
    a("s_waitcnt lgkmcnt(0)")
    a("s_barrier")
    stamp(a, 3)
    p1.frag_addrs(a, p1.V_XE, p1.V_XO, Q.L_G)
    for r in range(48): a(f"v_mov_b32 v{Q.ACC+r}, 0")
    for x in act_reads(Q.XF, 0, 4, p1.V_XE, p1.V_XO, 0): a(x)
    gemm_stream(a, st, Q, first=False)
    stamp(a, 4)
    Q.gemm2_epilogue(a)
    a("s_waitcnt lgkmcnt(0)")
    a("s_barrier")
    Q.part_store(a)
    a("s_waitcnt vmcnt(0)")
    a("s_barrier")
    stamp(a, 5)
    a("s_cmp_eq_u32 s3, 0"); a("s_cbranch_scc0 L_m_nf")
    a(f"s_lshl_b32 s31, s{Q.S_RB}, 3")
    a(f"s_add_u32 s31, s31, s{Q.S_J8}")
    a("s_lshl_b32 s31, s31, 7")
    set_flag(a, F_MLP, 31, 12, 13)
    a(f"s_lshl_b32 s31, s{Q.S_RB}, 10")
    a(f"s_add_u32 s31, s31, {F_MLP:#x}")
    a(f"v_lshlrev_b32 v12, 7, v1")
    a(f"v_add_u32 v12, s31, v12")
    poll_flags(a, 12, 13, 0xff)
    a.label("L_m_nf")
    a("s_barrier")
    stamp(a, 6)
    Q.final_reduce(a)
    stamp(a, 7)

def gemm_stream(a, st, Q, first):
    D, NB, NR = st.D, st.NB, 4
    base = 0 if first else 18
    acc_of = lambda t, rt: Q.ACC + 16 * t + 4 * rt
    def step(n, ks, looped_u=None):
        slot = n % D
        cur = ks & 1; nxt = 1 - cur
        mf = []
        for rt in range(NR):
            for t in range(NB):
                x = Q.XF + 4 * (cur * NR + rt); w = st.reg(slot, t)
                mf.append(mfma(acc_of(t, rt), w, x))
        remaining = 36 - (n + 1)
        inflight_after = min(D - 1, remaining)
        a(f"s_waitcnt vmcnt({inflight_after*NB}) lgkmcnt(0)")
        return mf, slot, nxt
    for ks in range(18):
        n = base + ks
        mf, slot, nxt = step(n, ks)
        if ks < 17:
            bse = p1.V_XO if (ks + 1) & 1 else p1.V_XE
            rd = [f"ds_read_b128 v[{Q.XF+4*(nxt*NR+rt)}:{Q.XF+4*(nxt*NR+rt)+3}], v{bse} offset:{rt*18432 + ((ks+1)>>1)*128}" for rt in range(NR)]
        else: rd = []
        interleave(a, mf, rd, lead=1, per=2)
        if n + D < 36:
            if n + D == 18:
                a(f"s_add_u32 s{st.soff}, s{st.soff}, {W4P - W3P - 18*3072:#x}")
            for x in st.loads(slot): a(x)

PRELUDE = None
def prelude(a, kind, base, rounds):
    srd2 = "s[92:95]"
    a("s_mov_b32 s92, s34"); a("s_mov_b32 s93, s35"); a("s_mov_b32 s94, 0x10000000"); a("s_mov_b32 s95, 0x20000")
    a(f"s_mul_i32 s36, s2, {rounds*12288}")
    a(f"s_add_u32 s36, s36, {base:#x}")
    a("v_lshlrev_b32 v2, 4, v0")
    for r in range(rounds):
        if kind == "r":
            a(f"buffer_load_dwordx4 v[{20+4*(r%16)}:{23+4*(r%16)}], v2, {srd2}, s36 offen")
        else:
            a(f"buffer_store_dwordx4 v[20:23], v2, {srd2}, s36 offen sc1")
        a("s_add_u32 s36, s36, 12288")
        if r % 16 == 15: a("s_waitcnt vmcnt(0)")
    a("s_waitcnt vmcnt(0)")
    a("s_barrier")

def build(stop_after="P1"):
    a = Asm()
    K = NAME + "_kernel"
    a.label(K)
    p1.prologue(a)
    if common.STAMP_ON:
        for i in range(16): a(f"s_mov_b32 s{74+i}, 0")
    stamp(a, 0)
    if PRELUDE: prelude(a, *PRELUDE)
    a("s_cmp_ge_u32 s3, 8")
    a("s_cbranch_scc1 L_p0_help")
    p1.p0_ln(a)
    a("s_barrier")
    a("s_waitcnt vmcnt(0) lgkmcnt(0)")
    p1.finish_epoch(a)
    stamp(a, 3)
    a("s_barrier")
    a("s_cmp_eq_u32 s3, 0")
    a("s_cbranch_scc0 L_p0_nf")
    a("s_lshl_b32 s31, s2, 2")
    set_flag(a, F_XN, 31)
    p1.p1_wait_p0(a)
    a.label("L_p0_nf")
    a("s_barrier")
    a("s_cmp_ge_u32 s3, 4")
    a("s_cbranch_scc1 L_p1_q")
    p1.p1_kv(a)
    stamp(a, 6)
    a("s_branch L_p1_end")
    a.label("L_p1_q")
    p1.p1_q(a)
    a("s_setprio 0")
    stamp(a, 6)
    a("s_branch L_p1_end")
    a.label("L_p0_help")
    a(f"v_lshlrev_b32 v12, 2, v1")
    a(f"v_add_u32 v12, {p1.LFLAG}, v12")
    a("v_mov_b32 v13, 0")
    a("s_mov_b64 exec, 0xf")
    a("ds_write_b32 v12, v13")
    a("s_mov_b64 exec, -1")
    a("s_cmp_ge_u32 s2, 144")
    a("s_cbranch_scc1 L_p0_small")
    helpers.p0_issue(a)
    a("s_waitcnt lgkmcnt(0)")
    p1.finish_epoch(a)
    a("s_barrier")
    helpers.p0_finish(a)
    a("s_barrier")
    a("s_barrier")
    a("s_branch L_p1_h")
    a.label("L_p0_small")
    a("s_waitcnt lgkmcnt(0)")
    p1.finish_epoch(a)
    a("s_cmp_eq_u32 s3, 9")
    a("s_cbranch_scc1 L_p0_s9")
    a("s_cmp_ge_u32 s3, 10")
    a("s_cbranch_scc0 L_p0_idle")
    helpers.code_prefetch(a, K, "L_code_end")
    a("s_cmp_eq_u32 s3, 10")
    a("s_cbranch_scc0 L_p0_idle")
    helpers.zero_kv(a)
    a("s_branch L_p0_idle")
    a.label("L_p0_s9")
    helpers.job_setup_small(a, LDS_A1 + 40960)
    a(f"s_cmp_eq_u32 s{helpers.S_ACT}, 0")
    a("s_cbranch_scc1 L_p0_idle")
    helpers.job_loads(a)
    a("s_barrier"); a("s_barrier"); a("s_barrier")
    helpers.job_run(a)
    stamp(a, 6)
    a("s_branch L_p1_h")
    a.label("L_p0_idle")
    a("s_barrier"); a("s_barrier"); a("s_barrier")
    a.label("L_p1_h")
    a("s_cmp_eq_u32 s3, 8")
    a("s_cbranch_scc0 L_p1_hb")
    p1.p1_mapping(a)
    p1.p1_xn_dma(a)
    a("s_waitcnt vmcnt(0)")
    a.label("L_p1_hb")
    a("s_barrier")
    a.label("L_p1_end")
    a("s_waitcnt vmcnt(0) lgkmcnt(0)")
    stamp(a, 7)
    a("s_barrier")
    stamp(a, 8)
    a("s_cmp_eq_u32 s3, 0")
    a("s_cbranch_scc0 L_p1_flagged")
    a("s_lshl_b32 s31, s2, 2")
    set_flag(a, F_P1, 31)
    a.label("L_p1_flagged")
    if stop_after != "P1":
        phases_mid(a, stop_after)
    stamp_dump(a)
    a.label("L_exit")
    a("s_endpgm")
    a.label("L_code_end")
    n = a.fix_hazards()
    errs = a.check_waits([K])
    for e in errs: print("WAITCHECK:", e)
    hdr = open("cdna_kernels/" + NAME + ".s.ref").read().split("; Override launch")[0]
    txt = hdr + "; @launch grid=(256,1,1) block=(768,1,1) lds=163840\n"
    txt += '.amdgcn_target "amdgcn-amd-amdhsa--gfx950"\n.text\n'
    txt += f".globl {K}\n.p2align 8\n.type {K},@function\n"
    txt += a.text()
    txt += f""".section .rodata,"a"
.p2align 6
.amdhsa_kernel {K}
  .amdhsa_next_free_vgpr 168
  .amdhsa_next_free_sgpr 96
  .amdhsa_accum_offset 168
  .amdhsa_group_segment_fixed_size 0
  .amdhsa_kernarg_size 88
  .amdhsa_user_sgpr_count 2
  .amdhsa_user_sgpr_kernarg_segment_ptr 1
  .amdhsa_system_sgpr_workgroup_id_x 1
  .amdhsa_float_denorm_mode_32 3
.end_amdhsa_kernel
"""
    return txt, n

if __name__ == "__main__":
    if "--stamp" in sys.argv:
        common.STAMP_ON = True; sys.argv.remove("--stamp")
    for x in list(sys.argv):
        if x.startswith("--prelude="):
            k, bs, rd = x.split("=")[1].split(",")
            PRELUDE = (k, int(bs, 0), int(rd)); sys.argv.remove(x)
    stop = sys.argv[1] if len(sys.argv) > 1 else "P1"
    out = sys.argv[2] if len(sys.argv) > 2 else "k.s"
    txt, n = build(stop)
    open(out, "w").write(txt)
    print("nops inserted:", n, "bytes:", len(txt))
```

```python
from asmlib import *
NAME = "sequential_preLN__linear_attn_block__mixer_s_mlp__prompt"
WS_EPOCH = 0x0
F_P0D = 0x08000
F_P2  = 0x10000
F_P2B = 0x18000
F_P3  = 0x20000
F_MLP = 0x28000
C_P1  = 0x3C000
C_PK  = 0x3C400
F_G   = 0x3D000
F_PKD = 0x3F000
KV    = 0x30000
KV_HEAD = 1536
HSTAT = 0x40000
X1STAT= 0x50000
C1P   = 0x60000
C3P   = 0x62000
PQ    = 0x100000
HB    = 0x340000
HH    = 0x580000
X1    = 0x7C0000
WSP   = 0xA00000
WSP_SZ = 663552
W3P   = 0xC00000
W4P   = 0x1200000
WQP   = 0x1720000
XN    = 0x1960000
PART  = 0x1C00000
WS_SIZE = 0x4000000
LDS_A0 = 0
LDS_A1 = 73728
LDS_MISC = 147456
LDS_TOTAL = 163840
S_WG = 2; S_WAVE = 3
SRD_X = 8; SRD_W = 12; SRD_WS = 16; SRD_OUT = 20; SRD_SRC = 24
S_T = 28; S_XCD = 29; S_LOC = 30
S_TMP = 31
M_Q0 = 64; M_Q1 = 66; M_Q2 = 68; M_Q3 = 70
S_TO = 72
LOG2E = 0x3fb8aa3b
EPS_1EM5 = 0x3727c5ac
EPS_1EM6 = 0x358637bd
ONES_BF16 = 0x3f803f80
import struct
def f2u(x): return struct.unpack("<I", struct.pack("<f", x))[0]

def srd(a, sreg, ptr_lo, size):
    a(f"s_mov_b32 s{sreg}, s{ptr_lo}")
    a(f"s_mov_b32 s{sreg+1}, s{ptr_lo+1}")
    a(f"s_mov_b32 s{sreg+2}, {size:#x}")
    a(f"s_mov_b32 s{sreg+3}, 0x20000")

def set_flag(a, base_const, s_index_off, vtmp=2, vtmp2=3):
    a(f"s_mov_b64 exec, 1")
    a(f"v_mov_b32 v{vtmp}, s{S_T}")
    a(f"v_mov_b32 v{vtmp2}, {base_const:#x}")
    a(f"buffer_store_dword v{vtmp}, v{vtmp2}, s[{SRD_WS}:{SRD_WS+3}], s{s_index_off} offen sc1")
    a(f"s_mov_b64 exec, -1")

def poll_flags(a, vaddr, vval, nlanes_mask_lo, nlanes_mask_hi=0, ndw=1, sleep=2):
    L = a.newlabel("Lpoll"); D = a.newlabel("Lpolld")
    a(f"s_mov_b32 exec_lo, {nlanes_mask_lo:#x}")
    a(f"s_mov_b32 exec_hi, {nlanes_mask_hi:#x}")
    a(f"s_mov_b32 s{S_TO}, 0x40000")
    a.label(L)
    if ndw == 1:
        a(f"buffer_load_dword v{vval}, v{vaddr}, s[{SRD_WS}:{SRD_WS+3}], 0 offen sc1")
        a("s_waitcnt vmcnt(0)")
        a(f"v_cmp_ne_u32 vcc, s{S_T}, v{vval}")
    else:
        assert ndw == 4
        a(f"buffer_load_dwordx4 v[{vval}:{vval+3}], v{vaddr}, s[{SRD_WS}:{SRD_WS+3}], 0 offen sc1")
        a("s_waitcnt vmcnt(0)")
        a(f"v_xor_b32 v{vval}, s{S_T}, v{vval}")
        a(f"v_xor_b32 v{vval+1}, s{S_T}, v{vval+1}")
        a(f"v_xor_b32 v{vval+2}, s{S_T}, v{vval+2}")
        a(f"v_xor_b32 v{vval+3}, s{S_T}, v{vval+3}")
        a(f"v_or_b32 v{vval}, v{vval}, v{vval+1}")
        a(f"v_or3_b32 v{vval}, v{vval}, v{vval+2}, v{vval+3}")
        a(f"v_cmp_ne_u32 vcc, 0, v{vval}")
    a(f"s_cbranch_vccz {D}")
    a(f"s_sub_u32 s{S_TO}, s{S_TO}, 1")
    a(f"s_cbranch_scc1 {D}")
    a(f"s_sleep {sleep}")
    a(f"s_branch {L}")
    a.label(D)
    a("s_mov_b64 exec, -1")

STAMPS = 0x80000
NSTAMP = 26
STAMP_ON = False
def stamp(a, idx):
    if not STAMP_ON: return
    assert idx < NSTAMP
    a(f"s_memtime s[100:101]")
    a("s_waitcnt lgkmcnt(0)")
    a(f"s_mov_b32 s{74+idx}, s100")
def stamp_dump(a):
    if not STAMP_ON: return
    a("s_mul_i32 s31, s2, 12")
    a("s_add_u32 s31, s31, s3")
    a("s_lshl_b32 s31, s31, 7")
    a(f"s_add_u32 s31, s31, {STAMPS:#x}")
    a("s_mov_b64 exec, 1")
    a("v_mov_b32 v3, 0")
    for i in range(NSTAMP):
        a(f"v_mov_b32 v2, s{74+i}")
        a(f"buffer_store_dword v2, v3, s[{SRD_WS}:{SRD_WS+3}], s31 offen offset:{4*i}")
    a("s_mov_b64 exec, -1")

def arrive(a, base_const, s_off, vt=12):
    a("s_mov_b64 exec, 1")
    a(f"v_mov_b32 v{vt}, 1")
    a(f"v_mov_b32 v{vt+1}, {base_const:#x}")
    a(f"buffer_atomic_add v{vt}, v{vt+1}, s[{SRD_WS}:{SRD_WS+3}], s{s_off} offen sc1")
    a("s_mov_b64 exec, -1")

def poll_counters(a, vaddr, vval, mask_lo, target, sleep=2):
    L = a.newlabel("Lpc"); D = a.newlabel("Lpcd")
    a(f"s_mov_b32 exec_lo, {mask_lo:#x}")
    a(f"s_mov_b32 exec_hi, 0")
    a(f"s_mov_b32 s{S_TO}, 0x40000")
    a.label(L)
    a(f"buffer_load_dword v{vval}, v{vaddr}, s[{SRD_WS}:{SRD_WS+3}], 0 offen sc1")
    a("s_waitcnt vmcnt(0)")
    a(f"v_cmp_ne_u32 vcc, {target}, v{vval}")
    a(f"s_cbranch_vccz {D}")
    a(f"s_sub_u32 s{S_TO}, s{S_TO}, 1")
    a(f"s_cbranch_scc1 {D}")
    a(f"s_sleep {sleep}")
    a(f"s_branch {L}")
    a.label(D)
    a("s_mov_b64 exec, -1")

def arrive_last(a, cnt_base, s_off, target, flag_base, s_flag_off, nrep, vt=12):
    L = a.newlabel("Larr")
    a("s_mov_b64 exec, 1")
    a(f"v_mov_b32 v{vt}, 1")
    a(f"v_mov_b32 v{vt+1}, {cnt_base:#x}")
    a(f"buffer_atomic_add v{vt}, v{vt+1}, s[{SRD_WS}:{SRD_WS+3}], s{s_off} offen sc0 sc1")
    a("s_waitcnt vmcnt(0)")
    a(f"v_readfirstlane_b32 s72, v{vt}")
    a("s_mov_b64 exec, -1")
    a(f"s_cmp_eq_u32 s72, {target-1}")
    a(f"s_cbranch_scc0 {L}")
    a(f"s_mov_b64 exec, {(1 << nrep) - 1:#x}")
    a(f"v_lshlrev_b32 v{vt+1}, 7, v1")
    a(f"v_add_u32 v{vt+1}, {flag_base:#x}, v{vt+1}")
    a(f"v_mov_b32 v{vt}, s{S_T}")
    a(f"buffer_store_dword v{vt}, v{vt+1}, s[{SRD_WS}:{SRD_WS+3}], s{s_flag_off} offen sc1")
    a("s_mov_b64 exec, -1")
    a.label(L)
```

```python
from common import *
from p1 import XS, WSR, WQ, SRC, finish_epoch

def div_const_s(a, dst, src, mul, sh):
    a(f"s_mul_i32 s{dst}, s{src}, {mul}")
    a(f"s_lshr_b32 s{dst}, s{dst}, {sh}")

P0SCR = LDS_A1 + 16384
def p0_issue(a):
    a.comment("---- P0: wqkv prepack job (issue) ----")
    div_const_s(a, 43, 2, 3641, 16)
    a("s_mul_i32 s42, s43, 18")
    a("s_sub_u32 s42, s2, s42")
    a("s_sub_u32 s44, s3, 8")
    a("s_lshl_b32 s40, s43, 2")
    a("s_add_u32 s40, s40, s44")
    a("s_mul_i32 s40, s40, 18")
    a("s_add_u32 s40, s40, s42")
    a(f"s_mul_i32 s45, s42, {32*3456}")
    a("s_lshl_b32 s46, s43, 7")
    a("s_add_u32 s45, s45, s46")
    a(f"s_mul_i32 s46, s44, {8*3456}")
    a("s_add_u32 s45, s45, s46")
    a(f"s_mul_i32 s47, s44, 6144")
    a(f"s_add_u32 s47, s47, {P0SCR}")
    T = 12
    for r in range(3):
        a(f"v_add_u32 v{T}, {64*r}, v1")
        a(f"v_mul_u32_u24 v{T+1}, 171, v{T}")
        a(f"v_lshrrev_b32 v{T+1}, 13, v{T+1}")
        a(f"v_mul_u32_u24 v{T+2}, 48, v{T+1}")
        a(f"v_sub_u32 v{T+2}, v{T}, v{T+2}")
        a(f"v_lshrrev_b32 v{T+3}, 4, v{T+2}")
        a(f"v_and_b32 v{T+4}, 15, v{T+2}")
        a(f"v_mul_u32_u24 v{T+1}, 3456, v{T+1}")
        a(f"v_lshl_add_u32 v{T+1}, v{T+4}, 4, v{T+1}")
        a(f"v_add_u32 v{T+3}, 1, v{T+3}")
        a(f"v_cmp_eq_u32 vcc, 3, v{T+3}")
        a(f"v_cndmask_b32 v{T+3}, v{T+3}, 0, vcc")
        a(f"v_mul_u32_u24 v{T+3}, 1152, v{T+3}")
        a(f"v_add_u32 v{20+r}, v{T+1}, v{T+3}")
    stamp(a, 1)
    for g in range(2):
        for r in range(3):
            a(f"s_add_u32 m0, s47, {1024*(3*g+r)}")
            a("s_nop 0")
            a(f"buffer_load_dwordx4 v{20+r}, {WQ}, s45 offen lds")
        if g == 0: a(f"s_add_u32 s45, s45, {4*3456}")
    stamp(a, 10)
    a("s_lshl_b32 s46, s44, 3")
    a("s_lshr_b32 s48, 0x10080800, s46"); a("s_and_b32 s48, s48, 0xff")
    a("s_lshr_b32 s49, 0x08280020, s46"); a("s_and_b32 s49, s49, 0xff")
    a("s_lshl_b32 s50, s43, 4")
    a("s_lshl_b32 s51, s44, 5")
    a("s_add_u32 s50, s50, s51")
    a(f"s_add_u32 s50, s50, {P0SCR}")
    a(f"v_lshrrev_b32 v{T}, 4, v1")
    a(f"v_lshlrev_b32 v{T}, 3, v{T}")
    a(f"v_bfe_u32 v{T+1}, v1, 2, 2")
    a(f"v_add_u32 v{T}, v{T}, v{T+1}")
    a(f"v_mul_u32_u24 v{T}, 768, v{T}")
    a(f"v_add_u32 v{T}, s50, v{T}")
    a(f"v_and_b32 v{T+1}, 3, v1")
    a(f"v_lshl_add_u32 v{T+2}, v{T+1}, 3, v{T}")
    a(f"v_add_u32 v{T+2}, s48, v{T+2}")
    a(f"v_min_u32 v{T+1}, 2, v{T+1}")
    a(f"v_lshlrev_b32 v{T+1}, 8, v{T+1}")
    a(f"v_add3_u32 v{T+3}, v{T}, v{T+1}, s49")
    a("s_lshl_b32 s46, s40, 12")
    a(f"s_add_u32 s46, s46, {WQP:#x}")
    a(f"v_lshlrev_b32 v{T+4}, 4, v1")
    stamp(a, 11)
    a("s_waitcnt vmcnt(0)")
    stamp(a, 2)

def p0_finish(a):
    T = 12
    F = 28
    for t in range(3):
        a(f"ds_read_b64_tr_b16 v[{F+4*t}:{F+4*t+1}], v{T+2} offset:{256*t}")
        a(f"ds_read_b64_tr_b16 v[{F+4*t+2}:{F+4*t+3}], v{T+2} offset:{256*t+4*768}")
    a(f"ds_read_b64_tr_b16 v[{F+12}:{F+13}], v{T+3}")
    a(f"ds_read_b64_tr_b16 v[{F+14}:{F+15}], v{T+3} offset:{4*768}")
    a("s_mov_b32 s50, 0xf000f000"); a("s_mov_b32 s51, 0xf000f000")
    a("s_waitcnt lgkmcnt(0)")
    for r in range(4):
        a(f"v_cndmask_b32 v{F+12+r}, v{F+12+r}, 0, s[50:51]")
    for t in range(4):
        a(f"buffer_store_dwordx4 v[{F+4*t}:{F+4*t+3}], v{T+4}, {WSR}, s46 offen offset:{1024*t} sc1")
    stamp(a, 4)
    a("s_waitcnt vmcnt(0)")
    stamp(a, 5)

def code_prefetch(a, code_start, code_end):
    a.comment("---- code prefetch (WGs >= 144, wave 8): 4 KB chunk per WG ----")
    T = 12
    a("s_getpc_b64 s[32:33]")
    a.label("L_pc_ref")
    a(f"s_sub_u32 s32, s32, L_pc_ref-{code_start}")
    a("s_subb_u32 s33, s33, 0")
    a(f"s_sub_u32 s34, s{S_LOC}, 18")
    a("s_lshl_b32 s34, s34, 12")
    a(f"v_lshlrev_b32 v{T}, 6, v1")
    a(f"v_add_u32 v{T}, s34, v{T}")
    a(f"v_min_u32 v{T}, {code_end}-{code_start}-4, v{T}")
    a(f"global_load_dword v160, v{T}, s[32:33]")

def zero_kv(a):
    T = 12
    Lskip = a.newlabel("Lz")
    a(f"s_cmp_lt_u32 s2, 248")
    a(f"s_cbranch_scc1 {Lskip}")
    for r in range(4): a(f"v_mov_b32 v{32+r}, 0")
    a(f"v_lshlrev_b32 v{T}, 4, v1")
    a(f"s_sub_u32 s33, s2, 248")
    a(f"s_mul_i32 s31, s33, {4*KV_HEAD}")
    a(f"s_add_u32 s31, s31, {KV:#x}")
    for i in range(6):
        if i == 4:
            a(f"s_add_u32 s31, s31, 4096")
        a(f"buffer_store_dwordx4 v[32:35], v{T}, {WSR}, s31 offen offset:{1024*(i%4)} sc1")
    a(f"s_lshl_b32 s31, s33, 7")
    a(f"s_add_u32 s31, s31, {C_P1:#x}")
    a("s_mov_b64 exec, 1")
    a(f"v_mov_b32 v{T}, 0")
    a(f"buffer_store_dword v32, v{T}, {WSR}, s31 offen sc1")
    a(f"buffer_store_dword v32, v{T}, {WSR}, s31 offen offset:{C_PK - C_P1} sc1")
    a(f"buffer_store_dword v32, v{T}, {WSR}, s31 offen offset:{C_SM - C_P1} sc1")
    a("s_mov_b64 exec, -1")
    a("s_waitcnt vmcnt(0)")
    a.label(Lskip)

S_RS = 42; S_SRC0 = 43; S_D = 44
S_DSTEP = 48; S_CS = 49; S_ACT = 50; S_SCR = 51

def job_common_init(a):
    a(f"s_mov_b32 s{S_ACT}, 0")
    a(f"s_mov_b32 s{S_CS}, 0")
    a(f"s_mov_b32 s{S_RS}, 1152")

def job_setup_small(a, scr):
    job_common_init(a)
    a("s_load_dwordx2 s[32:33], s[0:1], 16")
    a("s_load_dwordx4 s[36:39], s[0:1], 32")
    a("s_sub_u32 s60, s2, 144")
    div_const_s(a, 58, 60, 19, 9)
    a("s_mul_i32 s59, s58, 27")
    a("s_sub_u32 s59, s60, s59")
    div_const_s(a, 52, 59, 57, 9)
    a("s_mul_i32 s53, s52, 9")
    a("s_sub_u32 s53, s59, s53")
    a("s_cmp_lt_u32 s60, 81")
    a(f"s_cselect_b32 s{S_ACT}, 1, 0")
    a("s_waitcnt lgkmcnt(0)")
    a("s_cmp_eq_u32 s58, 1")
    a("s_cselect_b32 s32, s36, s32"); a("s_cselect_b32 s33, s37, s33")
    a("s_cmp_eq_u32 s58, 2")
    a("s_cselect_b32 s32, s38, s32"); a("s_cselect_b32 s33, s39, s33")
    srd(a, SRD_SRC, 32, 663552)
    a(f"s_mul_i32 s{S_SRC0}, s52, {192*1152}")
    a(f"s_lshl_b32 s54, s53, 7")
    a(f"s_add_u32 s{S_SRC0}, s{S_SRC0}, s54")
    for tt in range(4):
        a(f"s_lshl_b32 s54, s53, 2")
        a(f"s_add_u32 s54, s54, {tt}")
        a("s_mul_i32 s54, s54, 18")
        a("s_mul_i32 s55, s52, 6")
        a("s_add_u32 s54, s54, s55")
        a("s_lshl_b32 s54, s54, 10")
        a(f"s_mul_i32 s55, s58, {WSP_SZ}")
        a("s_add_u32 s54, s54, s55")
        a(f"s_add_u32 s{S_D+tt}, s54, {WSP:#x}")
    a(f"s_mov_b32 s{S_DSTEP}, 1024")
    a(f"s_mul_i32 s54, s52, 2304")
    a(f"s_lshl_b32 s55, s53, 8")
    a("s_add_u32 s54, s54, s55")
    a(f"s_add_u32 s54, s54, {C1P:#x}")
    a("s_cmp_eq_u32 s58, 1")
    a(f"s_cselect_b32 s{S_CS}, s54, 0")
    a(f"s_mov_b32 s{S_SCR}, {scr}")

def job_setup_big(a, which, scr):
    job_common_init(a)
    a(f"s_load_dwordx2 s[4:5], s[0:1], {48 if which == 3 else 56}")
    div_const_s(a, 52, S_LOC, 57, 9)
    a("s_mul_i32 s53, s52, 9")
    a(f"s_sub_u32 s53, s{S_LOC}, s53")
    a(f"s_cmp_lt_u32 s{S_LOC}, 27")
    a(f"s_cselect_b32 s{S_ACT}, 1, 0")
    for tt in range(4):
        a(f"s_lshl_b32 s54, s53, 2")
        a(f"s_add_u32 s54, s54, {tt}")
        div_const_s(a, 55, 54, 43, 7)
        a("s_mul_i32 s56, s55, 3")
        a("s_sub_u32 s56, s54, s56")
        a(f"s_mul_i32 s57, s{S_XCD}, 12")
        a("s_add_u32 s57, s57, s55")
        a("s_mul_i32 s57, s57, 55296")
        a("s_lshl_b32 s56, s56, 10")
        a("s_add_u32 s57, s57, s56")
        a(f"s_mul_i32 s56, s52, {6*3072}")
        a("s_add_u32 s57, s57, s56")
        a(f"s_add_u32 s{S_D+tt}, s57, {(W3P if which == 3 else W4P):#x}")
    a(f"s_mov_b32 s{S_DSTEP}, 3072")
    a("s_waitcnt lgkmcnt(0)")
    if which == 3:
        srd(a, SRD_SRC, 4, 576 * 9216)
        a(f"s_mov_b32 s{S_RS}, 9216")
        a(f"s_mul_i32 s{S_SRC0}, s52, {192*9216}")
        a(f"s_mul_i32 s54, s{S_XCD}, 1152")
        a(f"s_add_u32 s{S_SRC0}, s{S_SRC0}, s54")
        a(f"s_lshl_b32 s54, s53, 7")
        a(f"s_add_u32 s{S_SRC0}, s{S_SRC0}, s54")
        a(f"s_mul_i32 s{S_CS}, s52, 18432")
        a(f"s_mul_i32 s54, s{S_XCD}, 2304")
        a(f"s_add_u32 s{S_CS}, s{S_CS}, s54")
        a(f"s_lshl_b32 s54, s53, 8")
        a(f"s_add_u32 s{S_CS}, s{S_CS}, s54")
        a(f"s_add_u32 s{S_CS}, s{S_CS}, {C3P:#x}")
    else:
        srd(a, SRD_SRC, 4, 4608 * 1152)
        a(f"s_mul_i32 s{S_SRC0}, s{S_XCD}, {576*1152}")
        a(f"s_mul_i32 s54, s52, {192*1152}")
        a(f"s_add_u32 s{S_SRC0}, s{S_SRC0}, s54")
        a(f"s_lshl_b32 s54, s53, 7")
        a(f"s_add_u32 s{S_SRC0}, s{S_SRC0}, s54")
    a(f"s_mov_b32 s{S_SCR}, {scr}")

JD = 44
JF = 20
JC = 36
def job_loads(a):
    a(f"v_lshrrev_b32 v12, 3, v1")
    a(f"v_mul_lo_u32 v12, v12, s{S_RS}")
    a(f"v_and_b32 v13, 7, v1")
    a(f"v_lshl_add_u32 v140, v13, 4, v12")
    a(f"s_mov_b32 s52, s{S_SRC0}")
    a(f"s_lshl_b32 s53, s{S_RS}, 3")
    for n in range(24):
        a(f"buffer_load_dwordx4 v[{JD+4*n}:{JD+4*n+3}], v140, {SRC}, s52 offen")
        a(f"s_add_u32 s52, s52, s53")

def job_run(a):
    a(f"v_lshrrev_b32 v12, 3, v1")
    a(f"v_mul_u32_u24 v12, 144, v12")
    a(f"v_and_b32 v13, 7, v1")
    a(f"v_lshl_add_u32 v141, v13, 4, v12")
    a(f"v_add_u32 v141, s{S_SCR}, v141")
    a(f"v_lshrrev_b32 v12, 4, v1")
    a(f"v_lshlrev_b32 v12, 3, v12")
    a(f"v_bfe_u32 v13, v1, 2, 2")
    a(f"v_add_u32 v12, v12, v13")
    a(f"v_mul_u32_u24 v12, 144, v12")
    a(f"v_and_b32 v13, 3, v1")
    a(f"v_lshl_add_u32 v142, v13, 3, v12")
    a(f"v_add_u32 v142, s{S_SCR}, v142")
    a(f"v_lshlrev_b32 v143, 4, v1")
    for t in range(4): a(f"v_mov_b32 v{JC+t}, 0")
    a(f"s_mov_b32 s54, {ONES_BF16:#x}")
    for u in range(6):
        a("s_waitcnt vmcnt(20)")
        for i in range(4):
            r = JD + 16 * u + 4 * i
            a(f"ds_write_b128 v141, v[{r}:{r+3}] offset:{1152*i}")
        a("s_waitcnt lgkmcnt(0)")
        for tt in range(4):
            a(f"ds_read_b64_tr_b16 v[{JF+4*tt}:{JF+4*tt+1}], v142 offset:{32*tt}")
            a(f"ds_read_b64_tr_b16 v[{JF+4*tt+2}:{JF+4*tt+3}], v142 offset:{32*tt+576}")
        a("s_waitcnt lgkmcnt(0)")
        for tt in range(4):
            a(f"buffer_store_dwordx4 v[{JF+4*tt}:{JF+4*tt+3}], v143, {WSR}, s{S_D+tt} offen sc1")
            a(f"s_add_u32 s{S_D+tt}, s{S_D+tt}, s{S_DSTEP}")
        for r in range(4):
            for tt in range(4):
                a(f"v_dot2_f32_bf16 v{JC+tt}, v{JF+4*tt+r}, s54, v{JC+tt}")
    Ls = a.newlabel("Ljs")
    a(f"s_cmp_eq_u32 s{S_CS}, 0")
    a(f"s_cbranch_scc1 {Ls}")
    for tt in range(4):
        a(f"v_mov_b32 v{12+tt}, v{JC+tt}")
    for tt in range(4):
        a(f"v_permlane32_swap_b32 v{JC+tt}, v{12+tt}")
    for tt in range(4):
        a(f"v_add_f32 v{JC+tt}, v{JC+tt}, v{12+tt}")
    for tt in range(4):
        a(f"v_mov_b32 v{12+tt}, v{JC+tt}")
    for tt in range(4):
        a(f"v_permlane16_swap_b32 v{JC+tt}, v{12+tt}")
    for tt in range(4):
        a(f"v_add_f32 v{JC+tt}, v{JC+tt}, v{12+tt}")
    a(f"v_lshlrev_b32 v12, 2, v1")
    a(f"s_mov_b64 exec, s[{M_Q0}:{M_Q0+1}]")
    for tt in range(4):
        a(f"buffer_store_dword v{JC+tt}, v12, {WSR}, s{S_CS} offen offset:{64*tt} sc1")
    a("s_mov_b64 exec, -1")
    a.label(Ls)
```

```python
from common import *
from gemm import *
import p1
from p1 import XS, frag_addrs, tile_dma_voff, tile_dma, V_T0, V_L16, V_XE, V_XO

S_RB32 = 61; S_S4 = 62; S_IDX = 63
L_TILE = 0
L_HS = 36864
L_STG = 46080
L_STAT = 55296
L_JOB = 57344
V_TD = 4
V_EP = 5
V_ST = 6
AF = 20
AC = 52
XR = 60
MS = 64
WB = 96
def wreg(ks): return WB + 4 * ks

def mid_mapping(a):
    a(f"s_lshl_b32 s{S_RB32}, s{S_XCD}, 3")
    a(f"s_lshr_b32 s31, s{S_LOC}, 2")
    a(f"s_add_u32 s{S_RB32}, s{S_RB32}, s31")
    a(f"s_and_b32 s{S_S4}, s{S_LOC}, 3")
    a(f"s_lshl_b32 s{S_IDX}, s{S_RB32}, 2")
    a(f"s_add_u32 s{S_IDX}, s{S_IDX}, s{S_S4}")

def w_loads(a, m, ks_list):
    a(f"s_mul_i32 s31, s{S_S4}, 9")
    a(f"s_add_u32 s31, s31, s3")
    a(f"s_mul_i32 s31, s31, {18*1024}")
    a(f"s_add_u32 s31, s31, {WSP + m*WSP_SZ + ks_list[0]*1024:#x}")
    for n, ks in enumerate(ks_list):
        r = wreg(ks)
        a(f"buffer_load_dwordx4 v[{r}:{r+3}], v{V_L16}, {WSR}, s31 offen offset:{(n%4)*1024} sc1")
        if n % 4 == 3: a("s_add_u32 s31, s31, 4096")

def w_base(a, m_idx, sreg):
    a(f"s_mul_i32 s{sreg}, s{S_S4}, 9")
    a(f"s_add_u32 s{sreg}, s{sreg}, s3")
    a(f"s_mul_i32 s{sreg}, s{sreg}, {18*1024}")
    a(f"s_add_u32 s{sreg}, s{sreg}, {WSP + m_idx*WSP_SZ:#x}")

def small_gemm(a, next_m=None):
    frag_addrs(a, V_XE, V_XO, L_TILE)
    if next_m is not None: w_base(a, next_m, 40)
    def rd(ks):
        base = V_XO if ks & 1 else V_XE
        s = AF + 8 * (ks % 4)
        return [f"ds_read_b128 v[{s+4*rt}:{s+4*rt+3}], v{base} offset:{rt*18432 + (ks>>1)*128}" for rt in range(2)]
    for ks in range(3):
        for x in rd(ks): a(x)
    for ks in range(18):
        if ks + 3 < 18:
            for x in rd(ks + 3): a(x)
            a("s_waitcnt lgkmcnt(6)")
        else:
            a(f"s_waitcnt lgkmcnt({2*(17-ks)})")
        s = AF + 8 * (ks % 4)
        for rt in range(2):
            a(mfma(AC + 4 * rt, wreg(ks), s + 4 * rt, "0" if ks == 0 else None))
        if next_m is not None and ks % 2 == 1:
            i = ks // 2
            r = wreg(i)
            a(f"buffer_load_dwordx4 v[{r}:{r+3}], v{V_L16}, {WSR}, s40 offen offset:{(i%4)*1024} sc1")
            if i % 4 == 3: a("s_add_u32 s40, s40, 4096")

def ep_addrs(a):
    t = V_T0
    a(f"v_and_b32 v{t}, 15, v1")
    a(f"v_lshrrev_b32 v{t+1}, 4, v1")
    a(f"v_mul_u32_u24 v{V_EP}, 288, v{t}")
    a(f"v_lshl_add_u32 v{V_EP}, v{t+1}, 3, v{V_EP}")
    a(f"s_lshl_b32 s31, s3, 5")
    a(f"v_add_u32 v{V_EP}, s31, v{V_EP}")
    a(f"v_lshlrev_b32 v{V_ST}, 3, v{t}")
    a(f"v_add_u32 v{V_ST}, {L_STAT}, v{V_ST}")

def stats_accum(a, p0, p1_, rt, t):
    a(f"v_mov_b32 v{t}, 0"); a(f"v_mov_b32 v{t+1}, 0")
    a(f"v_dot2_f32_bf16 v{t}, v{p0}, s52, v{t}")
    a(f"v_dot2_f32_bf16 v{t+1}, v{p0}, v{p0}, v{t+1}")
    a(f"v_dot2_f32_bf16 v{t}, v{p1_}, s52, v{t}")
    a(f"v_dot2_f32_bf16 v{t+1}, v{p1_}, v{p1_}, v{t+1}")
    a(f"ds_add_f32 v{V_ST}, v{t} offset:{128*rt}")
    a(f"ds_add_f32 v{V_ST}, v{t+1} offset:{128*rt+4}")

def zero_stats(a):
    a(f"v_lshlrev_b32 v12, 2, v1")
    a(f"v_add_u32 v12, {L_STAT}, v12")
    a("v_mov_b32 v13, 0")
    a("ds_write_b32 v12, v13")

def coop_store(a, lds_src, buf, stat_buf):
    L9 = a.newlabel("Lcs9"); Ld = a.newlabel("Lcsd")
    a("s_cmp_ge_u32 s3, 9")
    a(f"s_cbranch_scc1 {L9}")
    a(f"v_lshlrev_b32 v12, 4, v0")
    a(f"v_add_u32 v13, {lds_src}, v12")
    a(f"ds_read_b128 v[16:19], v13")
    a(f"s_mul_i32 s31, s{S_S4}, 589824")
    a(f"s_mul_i32 s32, s{S_RB32}, 9216")
    a("s_add_u32 s31, s31, s32")
    a(f"s_add_u32 s31, s31, {buf:#x}")
    a("s_waitcnt lgkmcnt(0)")
    a(f"buffer_store_dwordx4 v[16:19], v12, {WSR}, s31 offen sc1")
    a(f"s_branch {Ld}")
    a.label(L9)
    if stat_buf is not None:
        a("s_cmp_eq_u32 s3, 9")
        a(f"s_cbranch_scc0 {Ld}")
        a(f"s_mov_b64 exec, s[{M_Q0}:{M_Q0+1}]")
        a(f"v_add_u32 v13, {L_STAT}, v{V_L16}")
        a(f"ds_read_b128 v[16:19], v13")
        a(f"s_lshl_b32 s31, s{S_IDX}, 8")
        a(f"s_add_u32 s31, s31, {stat_buf:#x}")
        a("s_waitcnt lgkmcnt(0)")
        a(f"buffer_store_dwordx4 v[16:19], v{V_L16}, {WSR}, s31 offen sc1")
        a("s_mov_b64 exec, -1")
    a.label(Ld)

def flag_idx128(a, base):
    a(f"s_lshl_b32 s31, s{S_IDX}, 7")
    set_flag(a, base, 31, 12, 13)

RAWB = 20
NH = 3
def mfma16(d, A, B, c=None):
    c = f"v[{d}:{d+3}]" if c is None else c
    return f"v_mfma_f32_16x16x16_bf16 v[{d}:{d+3}], v[{A}:{A+1}], v[{B}:{B+1}], {c}"

def p2_ostage(a):
    a.comment("---- P2 o-stage loads ----")
    t = 80
    a(f"v_and_b32 v{t}, 15, v1")
    a(f"v_lshrrev_b32 v{t+1}, 4, v1")
    a(f"v_lshlrev_b32 v2, 6, v{t}")
    a(f"v_lshl_add_u32 v2, v{t+1}, 4, v2")
    a(f"v_lshlrev_b32 v7, 2, v{t}")
    a(f"v_add_u32 v{t+2}, 16, v{t}")
    a(f"v_min_u32 v{t+2}, 18, v{t+2}")
    a(f"v_lshlrev_b32 v10, 6, v{t+2}")
    a(f"v_lshl_add_u32 v10, v{t+1}, 4, v10")
    a(f"v_lshlrev_b32 v11, 2, v{t+2}")
    a(f"v_mul_u32_u24 v{t+3}, 36, v{t}")
    a(f"v_lshl_add_u32 v{t+3}, v{t+1}, 3, v{t+3}")
    PQA = t + 3
    for hh in range(NH):
        b = RAWB + 20 * hh
        for r in range(4, 12): a(f"v_mov_b32 v{b+r}, 0")
    for hh in range(NH):
        b = RAWB + 20 * hh
        a(f"s_mul_i32 s32, s3, {NH}")
        a(f"s_add_u32 s32, s32, {hh}")
        a(f"s_min_u32 s32, s32, 31")
        a(f"s_mul_i32 s33, s32, {KV_HEAD}")
        a(f"s_add_u32 s33, s33, {KV:#x}")
        a(f"s_mul_i32 s34, s32, 73728")
        a(f"s_mul_i32 s35, s{S_RB32}, {32*36}")
        a("s_add_u32 s34, s34, s35")
        a(f"s_add_u32 s34, s34, {PQ:#x}")
        a(f"buffer_load_dwordx4 v[{b}:{b+3}], v2, {WSR}, s33 offen sc1")
        a(f"buffer_load_dwordx3 v[{b+12}:{b+14}], v{PQA}, {WSR}, s34 offen sc1")
        a(f"buffer_load_dwordx3 v[{b+16}:{b+18}], v{PQA}, {WSR}, s34 offen offset:576 sc1")
        a("s_mov_b32 exec_lo, 0x44474447"); a("s_mov_b32 exec_hi, 0x44474447")
        a(f"buffer_load_dwordx4 v[{b+4}:{b+7}], v10, {WSR}, s33 offen sc1")
        a("s_mov_b32 exec_lo, 0"); a("s_mov_b32 exec_hi, 0xffff0000")
        a(f"buffer_load_dword v{b+8}, v7, {WSR}, s33 offen offset:1280 sc1")
        a(f"buffer_load_dword v{b+9}, v7, {WSR}, s33 offen offset:1408 sc1")
        a("s_mov_b32 exec_hi, 0x44470000")
        a(f"buffer_load_dword v{b+10}, v11, {WSR}, s33 offen offset:1280 sc1")
        a(f"buffer_load_dword v{b+11}, v11, {WSR}, s33 offen offset:1408 sc1")
        a("s_mov_b64 exec, -1")

def p2_ostage_compute(a, nyounger):
    t = 80
    Q, S1152, S7, MQ3 = 84, 85, 86, 87
    a(f"v_lshrrev_b32 v{Q}, 4, v1")
    a(f"v_cmp_eq_u32 vcc, 3, v{Q}")
    a(f"v_cndmask_b32 v{MQ3}, 0, -1, vcc")
    a(f"v_and_b32 v{t}, 15, v1")
    a(f"v_mul_u32_u24 v{S1152}, 1152, v{t}")
    a(f"v_and_b32 v{S7}, 7, v{t}")
    a(f"s_mov_b32 s33, {EPS_1EM6:#x}")
    D0, D1 = 8, 12
    AM, AL, RC, PK = 88, 89, 90, 92
    for hh in range(NH):
        b = RAWB + 20 * hh
        a(f"s_waitcnt vmcnt({nyounger + 8*(NH-1-hh)})")
        a(f"v_cvt_pk_bf16_f32 v{b}, v{b}, v{b+1}"); a(f"v_cvt_pk_bf16_f32 v{b+1}, v{b+2}, v{b+3}")
        a(f"v_cvt_pk_bf16_f32 v{b+4}, v{b+4}, v{b+5}"); a(f"v_cvt_pk_bf16_f32 v{b+5}, v{b+6}, v{b+7}")
        a(f"v_cvt_pk_bf16_f32 v{b+8}, v{b+8}, v{b+9}"); a(f"v_mov_b32 v{b+9}, 0")
        a(f"v_cvt_pk_bf16_f32 v{b+10}, v{b+10}, v{b+11}"); a(f"v_mov_b32 v{b+11}, 0")
        for rt in range(2):
            p = b + 12 + 4 * rt
            a(f"v_and_b32 v{p+2}, v{MQ3}, v{p+2}")
            a(f"v_mov_b32 v{p+3}, 0")
        a(f"s_mul_i32 s32, s3, {NH}")
        a(f"s_add_u32 s32, s32, {hh}")
        a(f"s_min_u32 s32, s32, 31")
        a(f"s_and_b32 s34, s32, 1")
        a(f"s_mul_i32 s35, s32, 36")
        a(f"s_lshl_b32 s36, s34, 2")
        a(f"s_add_u32 s36, s36, s35")
        a(f"s_xor_b32 s37, s34, 1")
        a(f"s_lshl_b32 s37, s37, 5")
        a(f"s_add_u32 s37, s37, s35")
        a(f"v_lshl_add_u32 v{AM}, v{Q}, 3, s36")
        a(f"v_lshrrev_b32 v{AL}, 4, v{AM}")
        a(f"v_xor_b32 v{AL}, v{AL}, v{S7}")
        a(f"v_and_b32 v{AM}, 15, v{AM}")
        a(f"v_lshl_add_u32 v{AM}, v{AL}, 4, v{AM}")
        a(f"v_add_u32 v{AM}, v{AM}, v{S1152}")
        a(f"s_lshr_b32 s38, s37, 4")
        a(f"s_and_b32 s37, s37, 15")
        a(f"v_xor_b32 v{AL}, s38, v{S7}")
        a(f"v_lshlrev_b32 v{AL}, 4, v{AL}")
        a(f"v_add3_u32 v{AL}, v{AL}, v{S1152}, s37")
        for rt in range(2):
            p = b + 12 + 4 * rt
            a(mfma16(D0, b, p, "0")); a(mfma16(D1, b + 4, p, "0"))
            a(mfma16(D0, b + 8, p + 2)); a(mfma16(D1, b + 10, p + 2))
            a(f"v_add_f32 v{RC}, s33, v{D1+2}")
            a(f"v_rcp_f32 v{RC}, v{RC}")
            for i in range(4): a(f"v_mul_f32 v{D0+i}, v{D0+i}, v{RC}")
            a(f"v_mul_f32 v{D1}, v{D1}, v{RC}"); a(f"v_mul_f32 v{D1+1}, v{D1+1}, v{RC}")
            a(f"v_cvt_pk_bf16_f32 v{PK}, v{D0}, v{D0+1}")
            a(f"v_cvt_pk_bf16_f32 v{PK+1}, v{D0+2}, v{D0+3}")
            a(f"v_cvt_pk_bf16_f32 v{PK+2}, v{D1}, v{D1+1}")
            a(f"ds_write_b64 v{AM}, v[{PK}:{PK+1}] offset:{18432*rt}")
            a(f"s_mov_b64 exec, s[{M_Q0}:{M_Q0+1}]")
            a(f"ds_write_b32 v{AL}, v{PK+2} offset:{18432*rt}")
            a("s_mov_b64 exec, -1")

def xres_loads(a, srd, base_s, dst):
    t = V_T0
    a(f"v_and_b32 v{t}, 15, v1")
    a(f"v_lshrrev_b32 v{t+1}, 4, v1")
    a(f"v_mul_u32_u24 v{t}, 1152, v{t}")
    a(f"v_lshl_add_u32 v{t}, v{t+1}, 3, v{t}")
    a(f"s_mul_i32 s31, s{S_RB32}, {32*1152}")
    a(f"s_mul_i32 s32, s{S_S4}, 288")
    a("s_add_u32 s31, s31, s32")
    a("s_lshl_b32 s32, s3, 5")
    a("s_add_u32 s31, s31, s32")
    a(f"buffer_load_dwordx2 v[{dst}:{dst+1}], v{t}, {srd}, s31 offen")
    a(f"s_add_u32 s31, s31, 18432")
    a(f"buffer_load_dwordx2 v[{dst+2}:{dst+3}], v{t}, {srd}, s31 offen")

def p2_epilogue(a):
    a(f"s_mov_b32 s52, {ONES_BF16:#x}")
    t = V_T0
    for rt in range(2):
        x0, x1 = XR + 2 * rt, XR + 2 * rt + 1
        ac = AC + 4 * rt
        a(f"v_lshlrev_b32 v{t}, 16, v{x0}"); a(f"v_and_b32 v{t+1}, 0xffff0000, v{x0}")
        a(f"v_lshlrev_b32 v{t+2}, 16, v{x1}"); a(f"v_and_b32 v{t+3}, 0xffff0000, v{x1}")
        for i in range(4): a(f"v_add_f32 v{ac+i}, v{ac+i}, v{t+i}")
        a(f"v_cvt_pk_bf16_f32 v{x0}, v{ac}, v{ac+1}")
        a(f"v_cvt_pk_bf16_f32 v{x1}, v{ac+2}, v{ac+3}")
        a(f"ds_write_b64 v{V_EP}, v[{x0}:{x1}] offset:{L_HS + 16*288*rt}")
        stats_accum(a, x0, x1, rt, t + 4)

def row_stats_loads(a, stat_buf, dst):
    a(f"v_and_b32 v12, 15, v1")
    a(f"v_lshlrev_b32 v12, 3, v12")
    a(f"s_lshl_b32 s31, s{S_RB32}, 10")
    a(f"s_add_u32 s31, s31, {stat_buf:#x}")
    for rt in range(2):
        for s4 in range(4):
            r = dst + 8 * rt + 2 * s4
            a(f"buffer_load_dwordx2 v[{r}:{r+1}], v12, {WSR}, s31 offen offset:{256*s4 + 128*rt} sc1")

def gelu_pairs(a, regs, tmp):
    n = len(regs)
    for r in regs: assert r % 2 == 0
    for u, r in enumerate(regs):
        a(f"v_pk_mul_f32 v[{tmp+2*u}:{tmp+2*u+1}], v[{r}:{r+1}], v[{r}:{r+1}]")
    for u, r in enumerate(regs):
        a(f"v_pk_fma_f32 v[{tmp+2*u}:{tmp+2*u+1}], v[{tmp+2*u}:{tmp+2*u+1}], s[54:55], v[{GA}:{GA+1}]")
    for u, r in enumerate(regs):
        a(f"v_pk_mul_f32 v[{tmp+2*u}:{tmp+2*u+1}], v[{tmp+2*u}:{tmp+2*u+1}], v[{r}:{r+1}]")
    for u in range(2 * n): a(f"v_exp_f32 v{tmp+u}, v{tmp+u}")
    for u, r in enumerate(regs):
        a(f"v_pk_add_f32 v[{tmp+2*u}:{tmp+2*u+1}], v[{tmp+2*u}:{tmp+2*u+1}], s[58:59]")
    for u in range(2 * n): a(f"v_rcp_f32 v{tmp+u}, v{tmp+u}")
    for u, r in enumerate(regs):
        a(f"v_pk_mul_f32 v[{r}:{r+1}], v[{r}:{r+1}], v[{tmp+2*u}:{tmp+2*u+1}]")

GA = 18
GELU_A = -2.0 * 0.7978845608028654 * 1.4426950408889634
GELU_B = GELU_A * 0.044715
def gelu_consts(a):
    a(f"s_mov_b32 s54, {f2u(GELU_B):#x}"); a(f"s_mov_b32 s55, {f2u(GELU_B):#x}")
    a(f"s_mov_b32 s58, 1.0"); a(f"s_mov_b32 s59, 1.0")
    a(f"v_mov_b32 v{GA}, {f2u(GELU_A):#x}"); a(f"v_mov_b32 v{GA+1}, {f2u(GELU_A):#x}")

def stats_finish(a, raw, double_ln):
    inv = f2u(1.0 / 576)
    for rt in range(2):
        b = raw + 8 * rt
        a(f"v_add_f32 v{b}, v{b}, v{b+2}"); a(f"v_add_f32 v{b+1}, v{b+1}, v{b+3}")
        a(f"v_add_f32 v{b+4}, v{b+4}, v{b+6}"); a(f"v_add_f32 v{b+5}, v{b+5}, v{b+7}")
        a(f"v_add_f32 v{b}, v{b}, v{b+4}"); a(f"v_add_f32 v{b+1}, v{b+1}, v{b+5}")
        m, sc, r1 = MS + rt, MS + 2 + rt, MS + 4 + rt
        a(f"v_mul_f32 v{m}, {inv:#x}, v{b}")
        a(f"v_mul_f32 v{b+1}, {inv:#x}, v{b+1}")
        a(f"v_fma_f32 v{b+1}, -v{m}, v{m}, v{b+1}")
        a(f"v_max_f32 v{b+1}, 0, v{b+1}")
        a(f"v_add_f32 v{b+2}, {EPS_1EM5:#x}, v{b+1}")
        a(f"v_rsq_f32 v{r1}, v{b+2}")
        if double_ln:
            a(f"v_mul_f32 v{b+2}, v{r1}, v{r1}")
            a(f"v_mul_f32 v{b+2}, v{b+2}, v{b+1}")
            a(f"v_add_f32 v{b+2}, {EPS_1EM5:#x}, v{b+2}")
            a(f"v_rsq_f32 v{b+2}, v{b+2}")
            a(f"v_mul_f32 v{sc}, v{r1}, v{b+2}")
        else:
            a(f"v_mov_b32 v{sc}, v{r1}")

def p2b_epilogue(a):
    C1 = MS + 6
    t = V_T0
    gelu_consts(a)
    for rt in range(2):
        ac = AC + 4 * rt; m, sc = MS + rt, MS + 2 + rt
        for i in range(4):
            a(f"v_fma_f32 v{ac+i}, -v{m}, v{C1+i}, v{ac+i}")
        for i in range(4):
            a(f"v_mul_f32 v{ac+i}, v{ac+i}, v{sc}")
    gelu_pairs(a, [AC, AC + 2, AC + 4, AC + 6], AF)
    for rt in range(2):
        ac = AC + 4 * rt
        a(f"v_cvt_pk_bf16_f32 v{XR+2*rt}, v{ac}, v{ac+1}")
        a(f"v_cvt_pk_bf16_f32 v{XR+2*rt+1}, v{ac+2}, v{ac+3}")
        a(f"ds_write_b64 v{V_EP}, v[{XR+2*rt}:{XR+2*rt+1}] offset:{L_STG + 16*288*rt}")

def p3_epilogue(a):
    a(f"s_mov_b32 s52, {ONES_BF16:#x}")
    t = V_T0
    for rt in range(2):
        a(f"ds_read_b64 v[{XR+2*rt}:{XR+2*rt+1}], v{V_EP} offset:{L_HS + 16*288*rt}")
    a("s_waitcnt lgkmcnt(0)")
    for rt in range(2):
        x0, x1 = XR + 2 * rt, XR + 2 * rt + 1
        ac = AC + 4 * rt; m, r1 = MS + rt, MS + 4 + rt
        a(f"v_lshlrev_b32 v{t}, 16, v{x0}"); a(f"v_and_b32 v{t+1}, 0xffff0000, v{x0}")
        a(f"v_lshlrev_b32 v{t+2}, 16, v{x1}"); a(f"v_and_b32 v{t+3}, 0xffff0000, v{x1}")
        for i in range(4): a(f"v_sub_f32 v{t+i}, v{t+i}, v{m}")
        for i in range(4): a(f"v_fma_f32 v{ac+i}, v{t+i}, v{r1}, v{ac+i}")
        a(f"v_cvt_pk_bf16_f32 v{x0}, v{ac}, v{ac+1}")
        a(f"v_cvt_pk_bf16_f32 v{x1}, v{ac+2}, v{ac+3}")
        a(f"ds_write_b64 v{V_EP}, v[{x0}:{x1}] offset:{L_STG + 16*288*rt}")
        stats_accum(a, x0, x1, rt, t + 4)

def c1_loads(a):
    a(f"v_lshrrev_b32 v12, 4, v1")
    a(f"v_lshlrev_b32 v12, 4, v12")
    a(f"s_mul_i32 s31, s{S_S4}, 576")
    a(f"s_lshl_b32 s32, s3, 6")
    a("s_add_u32 s31, s31, s32")
    a(f"s_add_u32 s31, s31, {C1P:#x}")
    a(f"buffer_load_dwordx4 v[72:75], v12, {WSR}, s31 offen sc1")
    a(f"buffer_load_dwordx4 v[76:79], v12, {WSR}, s31 offen offset:2304 sc1")
    a(f"s_add_u32 s31, s31, 4608")
    a(f"buffer_load_dwordx4 v[80:83], v12, {WSR}, s31 offen sc1")
def c1_sum(a):
    C1 = MS + 6
    for i in range(4):
        a(f"v_add_f32 v{76+i}, v{76+i}, v{80+i}")
    for i in range(4):
        a(f"v_add_f32 v{76+i}, v{76+i}, v{72+i}")
    for i in range(4):
        a(f"v_mov_b32 v{C1+i}, v{76+i}")

def p3_tile_dma(a):
    t = V_T0
    a(f"s_lshl_b32 s31, s3, 6")
    a(f"v_add_u32 v{t}, s31, v1")
    a(f"v_mul_u32_u24 v{t+1}, 911, v{t}")
    a(f"v_lshrrev_b32 v{t+1}, 16, v{t+1}")
    a(f"v_mul_u32_u24 v{t+2}, 72, v{t+1}")
    a(f"v_sub_u32 v{t+2}, v{t}, v{t+2}")
    a(f"v_xor_b32 v{t+2}, v{t+2}, v{t+1}")
    a(f"v_mul_u32_u24 v{t+3}, 57, v{t+2}")
    a(f"v_lshrrev_b32 v{t+3}, 10, v{t+3}")
    a(f"v_lshrrev_b32 v{t+4}, 1, v{t+3}")
    a(f"v_add_u32 v{t+4}, 1, v{t+4}")
    a(f"v_and_b32 v{t+5}, 1, v{t+3}")
    a(f"v_cmp_eq_u32 vcc, 1, v{t+5}")
    a(f"v_sub_u32 v{t+5}, 0, v{t+4}")
    a(f"v_cndmask_b32 v{t+4}, v{t+5}, v{t+4}, vcc")
    a(f"v_add_u32 v{t+1}, v{t+1}, v{t+4}")
    a(f"s_lshl_b32 s32, s{S_RB32}, 5")
    a(f"v_add_u32 v{t+1}, s32, v{t+1}")
    a(f"v_add_u32 v{t+4}, 2, v{t+4}")
    a(f"v_mul_u32_u24 v{t+4}, 288, v{t+4}")
    a(f"v_add_u32 v{t+4}, v{V_TD}, v{t+4}")
    a(f"s_mul_i32 s33, s{S_RB32}, 9216")
    a(f"s_add_u32 s33, s33, {HH - 576:#x}")
    a(f"s_lshl_b32 s31, s3, 10")
    a(f"v_mov_b32 v{t+6}, 0x7fffffff")
    for g in range(4):
        a(f"v_cmp_gt_u32 vcc, 2048, v{t+1}")
        a(f"v_cndmask_b32 v{t+5}, v{t+6}, v{t+4}, vcc")
        a(f"s_mov_b32 m0, s31")
        a(f"s_add_u32 s31, s31, 9216")
        a(f"buffer_load_dwordx4 v{t+5}, {WSR}, s33 offen sc1 lds")
        a(f"s_add_u32 s33, s33, 2304")
        a(f"v_add_u32 v{t+1}, 8, v{t+1}")
```

```python
from common import *
from gemm import *
import p1, mid
from p1 import frag_addrs, tile_dma_voff, tile_dma, V_T0, V_L16, V_XE, V_XO
from mid import gelu_consts, gelu_pairs, GA

S_J8 = 61; S_RB = 62
S_SO = 45; S_CNT = 47
L_X1 = LDS_A0; L_G = LDS_A1
L_RS = LDS_MISC
V_TD = 4
XF = 20
ACC = 52
WR = 100
DEPTH = 4
C3 = 148
RS = 160

def mlp_mapping(a):
    a(f"s_mov_b32 s{S_J8}, s{S_XCD}")
    a(f"s_mov_b32 s{S_RB}, s{S_LOC}")

def mlp_prologue(a):
    mlp_mapping(a)
    a(f"v_lshlrev_b32 v{V_L16}, 4, v1")
    a(f"s_mul_i32 s{S_SO}, s{S_J8}, 12")
    a(f"s_add_u32 s{S_SO}, s{S_SO}, s3")
    a(f"s_mul_i32 s{S_SO}, s{S_SO}, 55296")
    a(f"s_add_u32 s{S_SO}, s{S_SO}, {W3P:#x}")
    tile_dma_voff(a, V_TD, "s4")
    frag_addrs(a, V_XE, V_XO, L_X1)

def c3_loads(a):
    a(f"v_lshrrev_b32 v12, 4, v1")
    a(f"v_lshlrev_b32 v12, 4, v12")
    a(f"s_mul_i32 s31, s{S_J8}, 2304")
    a(f"s_mul_i32 s32, s3, 192")
    a("s_add_u32 s31, s31, s32")
    a(f"s_add_u32 s31, s31, {C3P:#x}")
    for k in range(3):
        for t in range(3):
            r = ACC + 12 * k + 4 * t
            a(f"buffer_load_dwordx4 v[{r}:{r+3}], v12, {WSR}, s31 offen offset:{64*t} sc1")
        if k < 2: a("s_add_u32 s31, s31, 18432")
def c3_sum(a):
    for i in range(12): a(f"v_add_f32 v{C3+i}, v{ACC+i}, v{ACC+12+i}")
    for i in range(12): a(f"v_add_f32 v{C3+i}, v{C3+i}, v{ACC+24+i}")

def row_stats(a):
    a(f"v_lshrrev_b32 v12, 5, v1")
    a(f"v_lshlrev_b32 v12, 10, v12")
    a(f"v_and_b32 v13, 31, v1")
    a(f"v_lshl_add_u32 v12, v13, 3, v12")
    a(f"s_lshl_b32 s31, s{S_RB}, 11")
    a(f"s_add_u32 s31, s31, {X1STAT:#x}")
    for s4 in range(4):
        a(f"buffer_load_dwordx2 v[{ACC+36+2*s4}:{ACC+37+2*s4}], v12, {WSR}, s31 offen offset:{256*s4} sc1")
def row_stats_finish(a):
    b = ACC + 36
    inv = f2u(1.0 / 576)
    a(f"v_add_f32 v{b}, v{b}, v{b+2}"); a(f"v_add_f32 v{b+1}, v{b+1}, v{b+3}")
    a(f"v_add_f32 v{b+4}, v{b+4}, v{b+6}"); a(f"v_add_f32 v{b+5}, v{b+5}, v{b+7}")
    a(f"v_add_f32 v{b}, v{b}, v{b+4}"); a(f"v_add_f32 v{b+1}, v{b+1}, v{b+5}")
    a(f"v_mul_f32 v{b}, {inv:#x}, v{b}")
    a(f"v_mul_f32 v{b+1}, {inv:#x}, v{b+1}")
    a(f"v_fma_f32 v{b+1}, -v{b}, v{b}, v{b+1}")
    a(f"v_max_f32 v{b+1}, 0, v{b+1}")
    a(f"v_add_f32 v{b+1}, {EPS_1EM5:#x}, v{b+1}")
    a(f"v_rsq_f32 v{b+2}, v{b+1}")
    a(f"v_mul_f32 v{b+3}, v{b}, v{b+2}")
    a(f"v_lshlrev_b32 v12, 3, v1")
    a(f"v_add_u32 v12, {L_RS}, v12")
    a(f"ds_write_b64 v12, v[{b+2}:{b+3}]")

def gemm1_epilogue(a):
    t = V_T0
    a(f"v_and_b32 v{t}, 15, v1")
    a(f"v_lshlrev_b32 v{t+1}, 3, v{t}")
    a(f"v_add_u32 v{t+1}, {L_RS}, v{t+1}")
    for rt in range(4):
        a(f"ds_read_b64 v[{RS+2*rt}:{RS+2*rt+1}], v{t+1} offset:{128*rt}")
    gelu_consts(a)
    a(f"v_lshrrev_b32 v{t+1}, 4, v1")
    a(f"v_lshrrev_b32 v{t+2}, 1, v{t+1}")
    a(f"s_mul_i32 s31, s3, 6")
    a(f"v_add_u32 v{t+2}, s31, v{t+2}")
    a(f"v_and_b32 v{t+3}, 7, v{t}")
    a(f"v_mul_u32_u24 v{t+4}, 1152, v{t}")
    a(f"v_and_b32 v{t+1}, 1, v{t+1}")
    a(f"v_lshl_add_u32 v{t+4}, v{t+1}, 3, v{t+4}")
    a(f"v_add_u32 v{t+4}, {L_G}, v{t+4}")
    for tt in range(3):
        a(f"v_add_u32 v{t+1}, {2*tt}, v{t+2}")
        a(f"v_xor_b32 v{t+1}, v{t+1}, v{t+3}")
        a(f"v_lshl_add_u32 v{XF+28+tt}, v{t+1}, 4, v{t+4}")
    a("s_waitcnt lgkmcnt(0)")
    for rt in range(4):
        rs, mr = RS + 2 * rt, RS + 2 * rt + 1
        for tt in range(3):
            ac = ACC + 16 * tt + 4 * rt
            for i in range(4):
                a(f"v_mul_f32 v{XF+i}, v{mr}, v{C3+4*tt+i}")
            for i in range(4):
                a(f"v_fma_f32 v{ac+i}, v{ac+i}, v{rs}, -v{XF+i}")
        regs = []
        for tt in range(3):
            ac = ACC + 16 * tt + 4 * rt
            regs += [ac, ac + 2]
        gelu_pairs(a, regs, XF + 4)
        for tt in range(3):
            ac = ACC + 16 * tt + 4 * rt
            a(f"v_cvt_pk_bf16_f32 v{XF+16+2*tt}, v{ac}, v{ac+1}")
            a(f"v_cvt_pk_bf16_f32 v{XF+17+2*tt}, v{ac+2}, v{ac+3}")
            a(f"ds_write_b64 v{XF+28+tt}, v[{XF+16+2*tt}:{XF+17+2*tt}] offset:{18432*rt}")

def gemm2_epilogue(a):
    t = V_T0
    a(f"v_and_b32 v{t}, 15, v1")
    a(f"v_lshrrev_b32 v{t+1}, 4, v1")
    a(f"v_lshrrev_b32 v{t+2}, 1, v{t+1}")
    a(f"s_mul_i32 s31, s3, 6")
    a(f"v_add_u32 v{t+2}, s31, v{t+2}")
    a(f"v_and_b32 v{t+3}, 7, v{t}")
    a(f"v_mul_u32_u24 v{t+4}, 1152, v{t}")
    a(f"v_and_b32 v{t+1}, 1, v{t+1}")
    a(f"v_lshl_add_u32 v{t+4}, v{t+1}, 3, v{t+4}")
    if L_X1: a(f"v_add_u32 v{t+4}, {L_X1}, v{t+4}")
    for tt in range(3):
        a(f"v_add_u32 v{t+1}, {2*tt}, v{t+2}")
        a(f"v_xor_b32 v{t+1}, v{t+1}, v{t+3}")
        a(f"v_lshl_add_u32 v{XF+28+tt}, v{t+1}, 4, v{t+4}")
    for rt in range(4):
        for tt in range(3):
            ac = ACC + 16 * tt + 4 * rt
            d = XF + 2 * ((3 * rt + tt) % 8)
            a(f"v_cvt_pk_bf16_f32 v{d}, v{ac}, v{ac+1}")
            a(f"v_cvt_pk_bf16_f32 v{d+1}, v{ac+2}, v{ac+3}")
            a(f"ds_write_b64 v{XF+28+tt}, v[{d}:{d+1}] offset:{18432*rt}")

def part_store(a):
    a(f"v_lshlrev_b32 v12, 4, v0")
    for i in range(6):
        a(f"ds_read_b128 v[{XF+4*i}:{XF+4*i+3}], v12 offset:{L_X1 + 12288*i}")
    for i in range(6):
        g = ACC + i
        a(f"v_add_u32 v13, {768*i}, v0")
        a(f"v_mul_u32_u24 v14, 58255, v13")
        a(f"v_lshrrev_b32 v14, 22, v14")
        a(f"v_mul_u32_u24 v15, 72, v14")
        a(f"v_sub_u32 v15, v13, v15")
        a(f"v_and_b32 v16, 7, v14")
        a(f"v_xor_b32 v15, v15, v16")
        a(f"v_mul_u32_u24 v14, 1152, v14")
        a(f"v_lshl_add_u32 v{g}, v15, 4, v14")
    a(f"s_mul_i32 s31, s{S_J8}, {2048*1152}")
    a(f"s_mul_i32 s32, s{S_RB}, 73728")
    a("s_add_u32 s31, s31, s32")
    a(f"s_add_u32 s31, s31, {PART:#x}")
    for i in range(6):
        a(f"s_waitcnt lgkmcnt({5-i})")
        a(f"buffer_store_dwordx4 v[{XF+4*i}:{XF+4*i+3}], v{ACC+i}, {WSR}, s31 offen sc1")

def final_reduce(a):
    OUT = f"s[{SRD_OUT}:{SRD_OUT+3}]"
    Ld = a.newlabel("Lfrd")
    a("s_cmp_ge_u32 s3, 9"); a(f"s_cbranch_scc1 {Ld}")
    a(f"v_mul_u32_u24 v12, 911, v0")
    a(f"v_lshrrev_b32 v12, 16, v12")
    a(f"v_mul_u32_u24 v13, 72, v12")
    a(f"v_sub_u32 v13, v0, v13")
    a(f"v_lshlrev_b32 v14, 4, v0")
    a(f"v_mul_u32_u24 v15, 57, v13")
    a(f"v_lshrrev_b32 v15, 10, v15")
    a(f"v_mul_u32_u24 v16, 18, v15")
    a(f"v_sub_u32 v16, v13, v16")
    a(f"v_mul_u32_u24 v12, 288, v12")
    a(f"v_lshl_add_u32 v12, v16, 4, v12")
    a(f"s_mov_b32 s31, 589824")
    a(f"v_mul_lo_u32 v15, v15, s31")
    a(f"v_add_u32 v15, v15, v12")
    a(f"s_lshl_b32 s32, s{S_RB}, 6")
    a(f"s_lshl_b32 s33, s{S_J8}, 3")
    a("s_add_u32 s32, s32, s33")
    a("s_mul_i32 s33, s32, 1152")
    a("s_mul_i32 s34, s32, 288")
    a(f"s_add_u32 s35, s33, {PART:#x}")
    for j in range(8):
        a(f"buffer_load_dwordx4 v[{XF+4*j}:{XF+4*j+3}], v14, {WSR}, s35 offen sc1")
        if j < 7: a(f"s_add_u32 s35, s35, {2048*1152}")
    a(f"s_add_u32 s35, s34, {HB:#x}")
    a(f"buffer_load_dwordx4 v[{ACC}:{ACC+3}], v15, {WSR}, s35 offen sc1")
    a(f"s_add_u32 s35, s34, {X1:#x}")
    a(f"buffer_load_dwordx4 v[{ACC+4}:{ACC+7}], v15, {WSR}, s35 offen sc1")
    S = ACC + 8
    a("s_waitcnt vmcnt(2)")
    for i in range(4):
        a(f"v_lshlrev_b32 v{S+2*i}, 16, v{XF+i}")
        a(f"v_and_b32 v{S+2*i+1}, 0xffff0000, v{XF+i}")
    for j in range(1, 8):
        for i in range(4):
            r = XF + 4 * j + i
            a(f"v_lshlrev_b32 v{S+8}, 16, v{r}")
            a(f"v_and_b32 v{S+9}, 0xffff0000, v{r}")
            a(f"v_pk_add_f32 v[{S+2*i}:{S+2*i+1}], v[{S+2*i}:{S+2*i+1}], v[{S+8}:{S+9}]")
    a("s_waitcnt vmcnt(0)")
    for b in (ACC + 4, ACC):
        for i in range(4):
            a(f"v_lshlrev_b32 v{S+8}, 16, v{b+i}")
            a(f"v_and_b32 v{S+9}, 0xffff0000, v{b+i}")
            a(f"v_pk_add_f32 v[{S+2*i}:{S+2*i+1}], v[{S+2*i}:{S+2*i+1}], v[{S+8}:{S+9}]")
    for i in range(4):
        a(f"v_cvt_pk_bf16_f32 v{XF+i}, v{S+2*i}, v{S+2*i+1}")
    a(f"buffer_store_dwordx4 v[{XF}:{XF+3}], v14, {OUT}, s33 offen")
    a.label(Ld)

def pk_wait(a):
    a(f"s_lshl_b32 s31, s{S_XCD}, 7")
    a(f"s_add_u32 s31, s31, {F_PKD:#x}")
    a(f"v_mov_b32 v12, s31")
    poll_flags(a, 12, 13, 1)

def l2_warm(a, base, vd):
    a(f"s_mul_i32 s31, s{S_XCD}, 663552")
    a(f"s_mul_i32 s32, s{S_LOC}, {162*128}")
    a("s_add_u32 s31, s31, s32")
    a(f"v_lshlrev_b32 v12, 7, v1")
    a(f"s_add_u32 s33, s31, {base:#x}")
    for k in range(3):
        if k == 2: a("s_mov_b32 exec_lo, -1"); a("s_mov_b32 exec_hi, 3")
        a(f"buffer_load_dword v{vd+k}, v12, {WSR}, s33 offen sc1")
        a("s_add_u32 s33, s33, 8192")
    a("s_mov_b64 exec, -1")
```

```python
from common import *
from gemm import *

XS = f"s[{SRD_X}:{SRD_X+3}]"; WQ = f"s[{SRD_W}:{SRD_W+3}]"; SRC = f"s[{SRD_SRC}:{SRD_SRC+3}]"

S_J = 48; S_RBK = 49
def prologue(a):
    a("s_cmp_ge_u32 s2, 256")
    a("s_cbranch_scc1 L_exit")
    a("s_load_dwordx4 s[4:7], s[0:1], 0")
    a("s_load_dwordx2 s[32:33], s[0:1], 64")
    a("s_load_dwordx2 s[34:35], s[0:1], 80")
    a("v_lshrrev_b32 v2, 6, v0")
    a("v_and_b32 v1, 63, v0")
    a("v_readfirstlane_b32 s3, v2")
    a(f"s_and_b32 s{S_XCD}, s2, 7")
    a(f"s_lshr_b32 s{S_LOC}, s2, 3")
    a(f"s_mov_b32 s{M_Q0}, 0xffff");     a(f"s_mov_b32 s{M_Q0+1}, 0")
    a(f"s_mov_b32 s{M_Q1}, 0xffff0000"); a(f"s_mov_b32 s{M_Q1+1}, 0")
    a(f"s_mov_b32 s{M_Q2}, 0");          a(f"s_mov_b32 s{M_Q2+1}, 0xffff")
    a(f"s_mov_b32 s{M_Q3}, 0");          a(f"s_mov_b32 s{M_Q3+1}, 0xffff0000")
    a("s_waitcnt lgkmcnt(0)")
    srd(a, SRD_X, 4, 2048 * 1152)
    srd(a, SRD_W, 6, 576 * 3456)
    srd(a, SRD_WS, 34, WS_SIZE)
    srd(a, SRD_OUT, 32, 2048 * 1152)
    a(f"s_load_dword s{S_T}, s[34:35], 0")
    p1_mapping(a)

def p1_mapping(a):
    a(f"s_and_b32 s48, s{S_XCD}, 1"); a("s_lshl_b32 s48, s48, 2"); a(f"s_and_b32 s31, s{S_LOC}, 3"); a("s_add_u32 s48, s48, s31")
    a(f"s_lshr_b32 s49, s{S_XCD}, 1"); a("s_lshl_b32 s49, s49, 3"); a(f"s_lshr_b32 s31, s{S_LOC}, 2"); a("s_add_u32 s49, s49, s31")

def finish_epoch(a):
    a(f"s_mul_i32 s{S_T}, s{S_T}, 1664525")
    a(f"s_add_u32 s{S_T}, s{S_T}, 1013904223")

def phi_many(a, pairs, tmp):
    G = 4
    for g in range(0, len(pairs), G):
        grp = pairs[g:g + G]
        for u in range(0, len(grp), 2):
            sr = grp[u][1]
            assert grp[u + 1][1] == sr + 1 and sr % 2 == 0
            a(f"v_pk_mul_f32 v[{tmp+u}:{tmp+u+1}], v[{sr}:{sr+1}], s[40:41]")
        for u in range(len(grp)): a(f"v_exp_f32 v{tmp+u}, v{tmp+u} clamp")
        for u in range(len(grp)): a(f"v_max_f32 v{tmp+4+u}, 0, v{grp[u][1]}")
        for u in range(0, len(grp), 2):
            a(f"v_pk_add_f32 v[{tmp+u}:{tmp+u+1}], v[{tmp+u}:{tmp+u+1}], s[42:43]")
        for u in range(0, len(grp), 2):
            d = grp[u][0]
            assert grp[u + 1][0] == d + 1 and d % 2 == 0
            a(f"v_pk_add_f32 v[{d}:{d+1}], v[{tmp+u}:{tmp+u+1}], v[{tmp+4+u}:{tmp+5+u}]")

def phi_consts(a):
    a(f"s_mov_b32 s40, {LOG2E:#x}"); a(f"s_mov_b32 s41, {LOG2E:#x}")
    a(f"s_mov_b32 s42, {EPS_1EM6:#x}"); a(f"s_mov_b32 s43, {EPS_1EM6:#x}")

V_XOFF = 2; V_L16 = 3
V_XE = 8; V_XO = 9
V_WA = 10
V_T0 = 12
XF = 20
ACC = 52
WR = 84
TT = 132
TMP = 148
RAW = 20

def p0_ln(a):
    a.comment("---- P0: layernorm of one row per wave ----")
    R0 = RAW
    for i in range(4): a(f"v_mov_b32 v{R0+4+i}, 0")
    a(f"s_lshl_b32 s31, s2, 3")
    a(f"s_add_u32 s31, s31, s3")
    a(f"s_mul_i32 s31, s31, 1152")
    a(f"v_lshlrev_b32 v{V_L16}, 4, v1")
    a(f"buffer_load_dwordx4 v[{R0}:{R0+3}], v{V_L16}, {XS}, s31 offen")
    a("s_mov_b64 exec, 0xff")
    a(f"buffer_load_dwordx4 v[{R0+4}:{R0+7}], v{V_L16}, {XS}, s31 offen offset:1024")
    a("s_mov_b64 exec, -1")
    A = V_T0
    for i in range(4): a(f"v_mov_b32 v{A+i}, 0")
    a(f"s_mov_b32 s32, {ONES_BF16:#x}")
    stamp(a, 1)
    a("s_waitcnt vmcnt(0)")
    stamp(a, 2)
    for i in range(8):
        a(f"v_dot2_f32_bf16 v{A+(i&1)}, v{R0+i}, s32, v{A+(i&1)}")
        a(f"v_dot2_f32_bf16 v{A+2+(i&1)}, v{R0+i}, v{R0+i}, v{A+2+(i&1)}")
    a(f"v_add_f32 v{A}, v{A}, v{A+1}")
    a(f"v_add_f32 v{A+1}, v{A+2}, v{A+3}")
    A1, A2 = A, A + 1
    for mod in ("quad_perm:[1,0,3,2]", "quad_perm:[2,3,0,1]", "row_half_mirror", "row_mirror"):
        a(f"v_add_f32_dpp v{A1}, v{A1}, v{A1} {mod} row_mask:0xf bank_mask:0xf")
        a(f"v_add_f32_dpp v{A2}, v{A2}, v{A2} {mod} row_mask:0xf bank_mask:0xf")
    for sw in ("v_permlane16_swap_b32", "v_permlane32_swap_b32"):
        a(f"v_mov_b32 v{A+2}, v{A1}"); a(f"v_mov_b32 v{A+3}, v{A2}")
        a(f"{sw} v{A1}, v{A+2}"); a(f"{sw} v{A2}, v{A+3}")
        a(f"v_add_f32 v{A1}, v{A1}, v{A+2}"); a(f"v_add_f32 v{A2}, v{A2}, v{A+3}")
    inv = f2u(1.0 / 576)
    a(f"v_mul_f32 v{A1}, {inv:#x}, v{A1}")
    a(f"v_mul_f32 v{A2}, {inv:#x}, v{A2}")
    a(f"v_fma_f32 v{A2}, -v{A1}, v{A1}, v{A2}")
    a(f"v_max_f32 v{A2}, 0, v{A2}")
    a(f"v_add_f32 v{A2}, {EPS_1EM5:#x}, v{A2}")
    a(f"v_rsq_f32 v{A+2}, v{A2}")
    a(f"v_mul_f32 v{A+4}, v{A1}, v{A+2}")
    a(f"v_sub_f32 v{A+4}, 0, v{A+4}")
    a(f"v_mov_b32 v{A+3}, v{A+2}")
    a(f"v_mov_b32 v{A+5}, v{A+4}")
    t = TMP
    for i in range(0, 8, 4):
        for u in range(4):
            r = R0 + i + u
            a(f"v_lshlrev_b32 v{t+2*u}, 16, v{r}")
            a(f"v_and_b32 v{t+2*u+1}, 0xffff0000, v{r}")
        for u in range(4):
            a(f"v_pk_fma_f32 v[{t+2*u}:{t+2*u+1}], v[{t+2*u}:{t+2*u+1}], v[{A+2}:{A+3}], v[{A+4}:{A+5}]")
        for u in range(4):
            a(f"v_cvt_pk_bf16_f32 v{R0+i+u}, v{t+2*u}, v{t+2*u+1}")
    a(f"s_add_u32 s31, s31, {XN:#x}")
    a(f"buffer_store_dwordx4 v[{R0}:{R0+3}], v{V_L16}, {WSR}, s31 offen sc1")
    a("s_mov_b64 exec, 0xff")
    a(f"buffer_store_dwordx4 v[{R0+4}:{R0+7}], v{V_L16}, {WSR}, s31 offen offset:1024 sc1")
    a("s_mov_b64 exec, -1")

def tile_dma_voff(a, vdst, layout, t=V_T0):
    a(f"s_lshl_b32 s31, s3, 6")
    a(f"v_add_u32 v{t}, s31, v1")
    a(f"v_mul_u32_u24 v{t+1}, 911, v{t}")
    a(f"v_lshrrev_b32 v{t+1}, 16, v{t+1}")
    a(f"v_mul_u32_u24 v{t+2}, 72, v{t+1}")
    a(f"v_sub_u32 v{t+2}, v{t}, v{t+2}")
    a(f"v_xor_b32 v{t+2}, v{t+2}, v{t+1}")
    if layout == "row":
        a(f"v_mul_u32_u24 v{t+1}, 1152, v{t+1}")
        a(f"v_lshl_add_u32 v{vdst}, v{t+2}, 4, v{t+1}")
    else:
        a(f"v_mul_u32_u24 v{t+3}, 57, v{t+2}")
        a(f"v_lshrrev_b32 v{t+3}, 10, v{t+3}")
        a(f"v_mul_u32_u24 v{t+4}, 18, v{t+3}")
        a(f"v_sub_u32 v{t+4}, v{t+2}, v{t+4}")
        a(f"v_mul_u32_u24 v{t+1}, 288, v{t+1}")
        a(f"v_lshl_add_u32 v{t+1}, v{t+4}, 4, v{t+1}")
        a(f"s_mov_b32 s31, 589824")
        a(f"v_mul_lo_u32 v{t+3}, v{t+3}, s31")
        a(f"v_add_u32 v{vdst}, v{t+1}, v{t+3}")

def tile_dma(a, vofs, s_src, group_stride, ngroups, lds_base, sc1=True, nt=False):
    a(f"s_lshl_b32 s31, s3, 10")
    if lds_base: a(f"s_add_u32 s31, s31, {lds_base}")
    for g in range(ngroups):
        a(f"s_mov_b32 m0, s31")
        a(f"s_add_u32 s31, s31, 9216")
        a(f"buffer_load_dwordx4 v{vofs}, {WSR}, s{s_src} offen{' sc1' if sc1 else ''}{' nt' if nt else ''} lds")
        a(f"s_add_u32 s{s_src}, s{s_src}, {group_stride}")

def frag_addrs(a, xe=V_XE, xo=V_XO, base=0, t=V_T0):
    a(f"v_and_b32 v{t}, 15, v1")
    a(f"v_lshrrev_b32 v{t+1}, 4, v1")
    a(f"v_and_b32 v{t+2}, 7, v{t}")
    a(f"v_mul_u32_u24 v{t+3}, 1152, v{t}")
    if base: a(f"v_add_u32 v{t+3}, {base}, v{t+3}")
    a(f"v_xor_b32 v{t+4}, v{t+1}, v{t+2}")
    a(f"v_lshl_add_u32 v{xe}, v{t+4}, 4, v{t+3}")
    a(f"v_or_b32 v{t+4}, 4, v{t+1}")
    a(f"v_xor_b32 v{t+4}, v{t+4}, v{t+2}")
    a(f"v_lshl_add_u32 v{xo}, v{t+4}, 4, v{t+3}")

S_A = 44

S_SO = 45; S_CNT = 47
LFLAG = LDS_MISC
LXCH = LDS_MISC + 64
QSTG = LDS_A1

def p1_wait_p0(a):
    a(f"s_mul_i32 s31, s{S_J}, 18")
    a(f"s_lshl_b32 s32, s{S_RBK}, 3")
    a(f"s_sub_u32 s32, s32, 18")
    a(f"s_add_u32 s33, s{S_J}, {248-26}")
    a(f"v_add_u32 v{V_T0}, s31, v1")
    a(f"v_add_u32 v{V_T0+1}, s32, v1")
    a(f"v_cmp_lt_u32 vcc, 17, v1")
    a(f"v_cndmask_b32 v{V_T0}, v{V_T0}, v{V_T0+1}, vcc")
    a(f"v_add_u32 v{V_T0+1}, s33, v1")
    a(f"v_cmp_lt_u32 vcc, 25, v1")
    a(f"v_cndmask_b32 v{V_T0}, v{V_T0}, v{V_T0+1}, vcc")
    a(f"v_lshlrev_b32 v{V_T0}, 7, v{V_T0}")
    a(f"v_add_u32 v{V_T0}, {F_P0D:#x}, v{V_T0}")
    poll_flags(a, V_T0, V_T0 + 1, (1 << 27) - 1, sleep=3)
    stamp(a, 9)

V_TD = 4
def p1_xn_dma(a):
    tile_dma_voff(a, V_TD, "row")
    a(f"s_mul_i32 s33, s{S_RBK}, {64*1152}")
    a(f"s_add_u32 s33, s33, {XN:#x}")
    tile_dma(a, V_TD, 33, 9216, 8, LDS_A0)

def p1_stream_setup(a, first_tile):
    a(f"s_lshl_b32 s31, s{S_J}, 2")
    a(f"s_add_u32 s31, s31, s{S_A}")
    a(f"s_mul_i32 s{S_SO}, s31, {18*4096}")
    a(f"s_add_u32 s{S_SO}, s{S_SO}, {WQP + first_tile*1024:#x}")
    a(f"v_lshlrev_b32 v{V_L16}, 4, v1")

def p1_gemm(a, w_is_A, acc_init):
    p1_xn_dma(a)
    a("s_barrier")
    st = Stream(2, 6, WR, V_L16, S_SO, 4096)
    for u in range(6):
        for x in st.loads(u): a(x)
    acc_init(a)
    a("s_waitcnt vmcnt(12)")
    a("s_barrier")
    stamp(a, 4)
    for x in act_reads(XF, 0, 4, V_XE, V_XO, 0): a(x)
    kloop(a, st, 4, XF, V_XE, V_XO, lambda t, rt: ACC + 16 * t + 4 * rt, w_is_A, 3, S_CNT)

def pack_frags(a, src, dst):
    for p in range(2):
        for u in range(2):
            r = src + 4 * (2 * p + u); d = dst + 4 * p + 2 * u
            a(f"v_cvt_pk_bf16_f32 v{d}, v{r}, v{r+1}")
            a(f"v_cvt_pk_bf16_f32 v{d+1}, v{r+2}, v{r+3}")

def odd_masks(a):
    a(f"s_and_b32 s56, s{S_A}, 1")
    a(f"s_sub_u32 s56, 0, s56")
    a(f"s_mov_b32 s57, s56")

def p1_kv(a):
    a.comment("---- P1 KV wave (tiles KM, VM) ----")
    a(f"s_mov_b32 s{S_A}, s3")
    p1_stream_setup(a, 0)
    frag_addrs(a)
    def init(a):
        for r in range(32): a(f"v_mov_b32 v{ACC+r}, 0")
    p1_gemm(a, [False, False], init)
    stamp(a, 5)
    phi_consts(a)
    KM, VM = ACC, ACC + 16
    phi_many(a, [(KM + i, KM + i) for i in range(16)], V_T0)
    KMf, VMf, Lf = XF, XF + 8, XF + 16
    pack_frags(a, KM, KMf); pack_frags(a, VM, VMf)
    T1, T2, T3, T4 = TT, TT + 4, TT + 8, TT + 12
    for p in range(2):
        a(mfma(T1, VMf + 4 * p, KMf + 4 * p, "0" if p == 0 else None))
    a(f"s_lshl_b32 s31, s{S_A}, 2")
    a(f"s_add_u32 s31, s31, {LFLAG}")
    a(f"v_mov_b32 v{V_T0}, s31")
    Lp = a.newlabel("Llf"); Ld = a.newlabel("Llfd")
    a(f"s_mov_b32 s{S_TO}, 0x100000")
    a.label(Lp)
    a(f"ds_read_b32 v{V_T0+1}, v{V_T0}")
    a("s_waitcnt lgkmcnt(0)")
    a(f"v_cmp_ne_u32 vcc, 0, v{V_T0+1}")
    a(f"s_cbranch_vccnz {Ld}")
    a(f"s_sub_u32 s{S_TO}, s{S_TO}, 1")
    a(f"s_cbranch_scc0 {Lp}")
    a.label(Ld)
    a(f"s_lshl_b32 s31, s{S_A}, 11")
    a(f"s_add_u32 s31, s31, {LXCH}")
    a(f"v_add_u32 v{V_T0}, s31, v{V_L16}")
    a(f"ds_read_b128 v[{Lf}:{Lf+3}], v{V_T0}")
    a(f"ds_read_b128 v[{Lf+4}:{Lf+7}], v{V_T0} offset:1024")
    a("s_waitcnt lgkmcnt(0)")
    for p in range(2):
        for (T, A, B) in ((T2, Lf, KMf), (T3, Lf, VMf), (T4, Lf, Lf)):
            a(mfma(T, A + 4 * p, B + 4 * p, "0" if p == 0 else None))
    a(f"s_lshl_b32 s31, s{S_J}, 2")
    a(f"s_add_u32 s31, s31, s{S_A}")
    a(f"s_mul_i32 s31, s31, {KV_HEAD}")
    a(f"s_add_u32 s31, s31, {KV:#x}")
    odd_masks(a)
    a(f"s_and_b64 s[58:59], s[56:57], s[{M_Q1}:{M_Q1+1}]")
    d = V_T0; q = V_T0 + 1; ad = V_T0 + 2; val = V_T0 + 3; ad2 = V_T0 + 4
    a(f"v_and_b32 v{d}, 15, v1")
    a(f"v_lshrrev_b32 v{q}, 4, v1")
    a(f"v_lshlrev_b32 v{ad}, 8, v{q}")
    a(f"v_lshl_add_u32 v{ad}, v{d}, 2, v{ad}")
    for i in range(4):
        a(f"buffer_atomic_add_f32 v{T1+i}, v{ad}, {WSR}, s31 offen offset:{64*i}")
    a(f"v_lshlrev_b32 v{ad}, 6, v{q}")
    a(f"v_add_u32 v{ad}, {16*64-64}, v{ad}")
    a(f"v_lshl_add_u32 v{ad}, v{d}, 2, v{ad}")
    a(f"v_cndmask_b32 v{val}, v{T2}, v{T2+2}, s[58:59]")
    a(f"s_or_b64 s[60:61], s[{M_Q1}:{M_Q1+1}], s[{M_Q3}:{M_Q3+1}]")
    a(f"s_mov_b64 exec, s[60:61]")
    a(f"buffer_atomic_add_f32 v{val}, v{ad}, {WSR}, s31 offen")
    a(f"s_mov_b64 exec, s[{M_Q1}:{M_Q1+1}]")
    a(f"v_cndmask_b32 v{val+2}, v{T2+1}, v{T2+3}, s[56:57]")
    a(f"buffer_atomic_add_f32 v{val+2}, v{ad}, {WSR}, s31 offen offset:64")
    a(f"s_mov_b64 exec, s[{M_Q0}:{M_Q0+1}]")
    a(f"v_lshlrev_b32 v{ad2}, 2, v{d}")
    a(f"v_cndmask_b32 v{val+3}, v{T3}, v{T3+2}, s[56:57]")
    a(f"v_cndmask_b32 v{val+4}, v{T3+1}, v{T3+3}, s[56:57]")
    a(f"buffer_atomic_add_f32 v{val+3}, v{ad2}, {WSR}, s31 offen offset:1280")
    a(f"buffer_atomic_add_f32 v{val+4}, v{ad2}, {WSR}, s31 offen offset:{1280+128}")
    a(f"s_mov_b64 exec, -1")
    a(f"s_and_b32 s52, s{S_A}, 1")
    a(f"s_lshl_b32 s52, s52, 1")
    a(f"s_lshl_b32 s53, 0x00030003, s52")
    a(f"s_mov_b32 s62, s53"); a(f"s_mov_b32 s63, s53")
    a(f"v_subrev_u32 v{ad2}, s52, v{d}")
    a(f"v_lshlrev_b32 v{ad2}, 7, v{ad2}")
    a(f"v_lshl_add_u32 v{ad2}, v{q}, 2, v{ad2}")
    a(f"v_add_u32 v{ad2}, {1280 + 64 - 4}, v{ad2}")
    a(f"v_cndmask_b32 v{TMP}, v{T4}, v{T4+2}, s[58:59]")
    a(f"v_cndmask_b32 v{TMP+1}, v{T4+1}, v{T4+3}, s[56:57]")
    a(f"s_and_b64 exec, s[60:61], s[62:63]")
    a(f"buffer_atomic_add_f32 v{TMP}, v{ad2}, {WSR}, s31 offen")
    a(f"s_and_b64 exec, s[{M_Q1}:{M_Q1+1}], s[62:63]")
    a(f"buffer_atomic_add_f32 v{TMP+1}, v{ad2}, {WSR}, s31 offen offset:4")
    a(f"s_mov_b64 exec, -1")

def p1_q(a):
    a.comment("---- P1 Q wave (tiles QM [W as A], L [x as A]) ----")
    a(f"s_sub_u32 s{S_A}, s3, 4")
    p1_stream_setup(a, 2)
    frag_addrs(a)
    def init(a):
        for r in range(16): a(f"v_mov_b32 v{ACC+r}, 0")
        a(f"s_mov_b32 s52, 0x10001000"); a(f"s_mov_b32 s53, 0x10001000")
        a(f"v_cndmask_b32 v{ACC+16}, 0, 1.0, s[52:53]")
        for r in range(1, 16): a(f"v_mov_b32 v{ACC+16+r}, v{ACC+16}")
    a("s_setprio 1")
    p1_gemm(a, [True, False], init)
    stamp(a, 5)
    phi_consts(a)
    QM, LL = ACC, ACC + 16
    PH = WR
    phi_many(a, [(PH + i, LL + i) for i in range(16)], V_T0)
    a(f"s_mov_b32 s52, 0x0f0f0f0f"); a(f"s_mov_b32 s53, 0x0f0f0f0f")
    for i in range(16):
        a(f"v_cndmask_b32 v{LL+i}, v{LL+i}, v{PH+i}, s[52:53]")
    Lf = XF
    pack_frags(a, LL, Lf)
    a(f"s_lshl_b32 s31, s{S_A}, 11")
    a(f"s_add_u32 s31, s31, {LXCH}")
    a(f"v_add_u32 v{V_T0}, s31, v{V_L16}")
    a(f"ds_write_b128 v{V_T0}, v[{Lf}:{Lf+3}]")
    a(f"ds_write_b128 v{V_T0}, v[{Lf+4}:{Lf+7}] offset:1024")
    a(f"s_lshl_b32 s31, s{S_A}, 2")
    a(f"s_add_u32 s31, s31, {LFLAG}")
    a(f"v_mov_b32 v{V_T0+1}, s31")
    a(f"v_mov_b32 v{V_T0+2}, 1")
    a("s_waitcnt lgkmcnt(0)")
    a(f"ds_write_b32 v{V_T0+1}, v{V_T0+2}")
    phi_many(a, [(QM + i, QM + i) for i in range(16)], V_T0 + 0)
    P = XF + 8
    for rt in range(4):
        a(f"v_cvt_pk_bf16_f32 v{P+2*rt}, v{QM+4*rt}, v{QM+4*rt+1}")
        a(f"v_cvt_pk_bf16_f32 v{P+2*rt+1}, v{QM+4*rt+2}, v{QM+4*rt+3}")
    a(f"s_mul_i32 s32, s{S_A}, 2304")
    a(f"s_add_u32 s32, s32, {QSTG}")
    a(f"v_and_b32 v{V_T0}, 15, v1")
    a(f"v_lshrrev_b32 v{V_T0+1}, 4, v1")
    a(f"v_mul_u32_u24 v{V_T0+2}, 36, v{V_T0}")
    a(f"v_add_u32 v{V_T0+2}, s32, v{V_T0+2}")
    a(f"v_lshl_add_u32 v{V_T0+2}, v{V_T0+1}, 3, v{V_T0+2}")
    a(f"v_add_u32 v{V_T0+3}, 1152, v{V_T0+2}")
    for rt in range(4):
        ad = V_T0 + 2 + (rt >> 1); o = 144 * (rt & 1)
        a(f"ds_write2_b32 v{ad}, v{P+2*rt}, v{P+2*rt+1} offset0:{o} offset1:{o+1}")
    a(f"s_and_b32 s52, s{S_A}, 1")
    a(f"s_lshl_b32 s52, s52, 1")
    a(f"s_lshl_b32 s53, 0x03000300, s52")
    a(f"s_mov_b32 s62, s53"); a(f"s_mov_b32 s63, s53")
    a(f"s_add_u32 s52, s52, 8")
    a(f"v_subrev_u32 v{V_T0+4}, s52, v{V_T0}")
    a(f"v_lshlrev_b32 v{V_T0+4}, 1, v{V_T0+4}")
    a(f"v_mul_u32_u24 v{V_T0+5}, 144, v{V_T0+1}")
    a(f"v_add3_u32 v{V_T0+4}, v{V_T0+4}, v{V_T0+5}, s32")
    a(f"s_mov_b64 exec, s[62:63]")
    for rt in range(4):
        for h in range(2):
            r = Lf + 2 * rt + h
            o = 576 * rt + 72 * h + 32
            a(f"ds_write_b16 v{V_T0+4}, v{r} offset:{o}")
            a(f"ds_write_b16_d16_hi v{V_T0+4}, v{r} offset:{o+36}")
    a("s_mov_b64 exec, -1")
    a(f"v_add_u32 v{V_T0+5}, s32, v{V_L16}")
    a("s_waitcnt lgkmcnt(0)")
    for i in range(3):
        a(f"ds_read_b128 v[{WR+4*i}:{WR+4*i+3}], v{V_T0+5} offset:{1024*i}")
    a(f"s_lshl_b32 s31, s{S_J}, 2")
    a(f"s_add_u32 s31, s31, s{S_A}")
    a(f"s_mul_i32 s31, s31, 73728")
    a(f"s_mul_i32 s32, s{S_RBK}, 2304")
    a(f"s_add_u32 s31, s31, s32")
    a(f"s_add_u32 s31, s31, {PQ:#x}")
    a("s_waitcnt lgkmcnt(0)")
    for i in range(2):
        a(f"buffer_store_dwordx4 v[{WR+4*i}:{WR+4*i+3}], v{V_L16}, {WSR}, s31 offen offset:{1024*i} sc1")
    a(f"s_mov_b64 exec, s[{M_Q0}:{M_Q0+1}]")
    a(f"buffer_store_dwordx4 v[{WR+8}:{WR+11}], v{V_L16}, {WSR}, s31 offen offset:2048 sc1")
    a("s_mov_b64 exec, -1")
```

```python
import sys
sys.path.insert(0, "gen")
from common import *
import common, p1, helpers, mid, mlp
from common import stamp, stamp_dump
from gemm import *

def br_wave(a, cond, val, target, taken_if=True):
    a(f"s_cmp_{cond}_u32 s3, {val}")
    a(f"s_cbranch_scc{1 if taken_if else 0} {target}")

def phase_p01(a, K):
    br_wave(a, "ge", 8, "L_p0_help")
    p1.p0_ln(a)
    a("s_barrier")
    a("s_waitcnt vmcnt(0) lgkmcnt(0)")
    p1.finish_epoch(a)
    stamp(a, 3)
    a("s_barrier")
    br_wave(a, "eq", 0, "L_p0_nf", False)
    a("s_lshl_b32 s31, s2, 7")
    set_flag(a, F_P0D, 31)
    p1.p1_wait_p0(a)
    a.label("L_p0_nf")
    a("s_barrier")
    br_wave(a, "ge", 4, "L_p1_q")
    p1.p1_kv(a)
    stamp(a, 6)
    a("s_branch L_p1_end")
    a.label("L_p1_q")
    p1.p1_q(a)
    a("s_setprio 0")
    stamp(a, 6)
    a("s_branch L_p1_end")
    a.label("L_p0_help")
    a(f"v_lshlrev_b32 v12, 2, v1")
    a(f"v_add_u32 v12, {p1.LFLAG}, v12")
    a("v_mov_b32 v13, 0")
    a("s_mov_b64 exec, 0xf")
    a("ds_write_b32 v12, v13")
    a("s_mov_b64 exec, -1")
    a("s_cmp_ge_u32 s2, 144")
    a("s_cbranch_scc1 L_p0_small")
    helpers.p0_issue(a)
    a("s_waitcnt lgkmcnt(0)")
    p1.finish_epoch(a)
    a("s_barrier")
    helpers.p0_finish(a)
    a("s_barrier")
    a(f"s_mov_b32 s73, 0")
    a("s_branch L_p0_j")
    a.label("L_p0_small")
    a("s_waitcnt lgkmcnt(0)")
    p1.finish_epoch(a)
    a(f"s_mov_b32 s73, 0")
    br_wave(a, "eq", 8, "L_p0_n8", False)
    helpers.code_prefetch(a, K, "L_code_end")
    helpers.zero_kv(a)
    a.label("L_p0_n8")
    br_wave(a, "eq", 11, "L_p0_n11", False)
    helpers.job_setup_small(a, LDS_A1 + 40960)
    a(f"s_mov_b32 s73, s{helpers.S_ACT}")
    a.label("L_p0_n11")
    a("s_barrier")
    a("s_cmp_eq_u32 s73, 0"); a("s_cbranch_scc1 L_p0_nl")
    helpers.job_loads(a)
    a.label("L_p0_nl")
    a("s_barrier")
    a.label("L_p0_j")
    br_wave(a, "eq", 9, "L_p0_j3")
    br_wave(a, "eq", 10, "L_p0_j4")
    a("s_branch L_p0_jx")
    a.label("L_p0_j3")
    helpers.job_setup_big(a, 3, LDS_A1 + 45568)
    a("s_branch L_p0_jl")
    a.label("L_p0_j4")
    helpers.job_setup_big(a, 4, LDS_A1 + 50176)
    a.label("L_p0_jl")
    a(f"s_mov_b32 s73, s{helpers.S_ACT}")
    a("s_cmp_eq_u32 s73, 0"); a("s_cbranch_scc1 L_p0_jx")
    helpers.job_loads(a)
    a.label("L_p0_jx")
    a("s_barrier")
    br_wave(a, "eq", 8, "L_p1_h8", False)
    p1.p1_mapping(a)
    p1.p1_xn_dma(a)
    a.label("L_p1_h8")
    a("s_barrier")
    br_wave(a, "eq", 8, "L_p1_h8b", False)
    a("s_waitcnt vmcnt(0)")
    a.label("L_p1_h8b")
    a("s_barrier")
    a("s_cmp_eq_u32 s73, 0"); a("s_cbranch_scc1 L_p1_end")
    helpers.job_run(a)
    stamp(a, 6)
    br_wave(a, "eq", 11, "L_p1_end")
    a("s_branch L_p1_end2")
    a.label("L_p1_end")
    a("s_waitcnt vmcnt(0)")
    a.label("L_p1_end2")
    a("s_waitcnt lgkmcnt(0)")
    stamp(a, 7)
    a("s_barrier")
    stamp(a, 8)
    br_wave(a, "eq", 0, "L_p1_nf", False)
    a(f"s_lshl_b32 s31, s{p1.S_J}, 7")
    a(f"s_lshl_b32 s32, s{p1.S_J}, 10")
    arrive_last(a, C_P1, 31, 32, F_G, 32, 8)
    a.label("L_p1_nf")
    br_wave(a, "lt", 9, "L_p1_flagged")
    br_wave(a, "eq", 11, "L_p1_flagged")
    a("s_cmp_eq_u32 s73, 0"); a("s_cbranch_scc1 L_p1_flagged")
    a("s_waitcnt vmcnt(0)")
    a(f"s_lshl_b32 s31, s{S_XCD}, 7")
    arrive_last(a, C_PK, 31, 54, F_PKD, 31, 1)
    a.label("L_p1_flagged")

def phases_mid(a, stop_after):
    M = mid
    M.mid_mapping(a)
    a(f"v_lshlrev_b32 v{p1.V_L16}, 4, v1")
    M.ep_addrs(a)
    p1.tile_dma_voff(a, M.V_TD, "s4")
    br_wave(a, "eq", 11, "L_p2_np", False)
    M.zero_stats(a)
    a(f"v_lshlrev_b32 v12, 10, v1")
    a(f"s_lshl_b32 s31, s{S_XCD}, 7")
    a(f"s_add_u32 s31, s31, {F_G:#x}")
    a(f"v_add_u32 v12, s31, v12")
    poll_flags(a, 12, 13, 0xff)
    a("s_cmp_eq_u32 s2, 0"); a("s_cbranch_scc0 L_p2_ne")
    a("s_mov_b32 s31, 0")
    set_flag(a, WS_EPOCH, 31, 12, 13)
    a.label("L_p2_ne")
    a("s_waitcnt lgkmcnt(0)")
    a.label("L_p2_np")
    stamp(a, 10)
    a("s_barrier")
    br_wave(a, "eq", 11, "L_p2_o1")
    M.p2_ostage(a)
    a.label("L_p2_o1")
    a("s_barrier")
    br_wave(a, "eq", 11, "L_p2_b")
    br_wave(a, "ge", 9, "L_p2_w9")
    M.w_loads(a, 0, list(range(18)))
    M.p2_ostage_compute(a, 18)
    M.xres_loads(a, p1.XS, None, M.XR)
    a("s_waitcnt lgkmcnt(0)")
    a("s_branch L_p2_b")
    a.label("L_p2_w9")
    M.p2_ostage_compute(a, 0)
    a("s_waitcnt lgkmcnt(0)")
    a.label("L_p2_b")
    stamp(a, 11)
    a("s_barrier")
    br_wave(a, "ge", 9, "L_p2_c")
    a("s_waitcnt vmcnt(0)")
    M.small_gemm(a, next_m=1)
    M.p2_epilogue(a)
    a("s_waitcnt lgkmcnt(0)")
    a.label("L_p2_c")
    stamp(a, 12)
    a("s_barrier")
    M.coop_store(a, M.L_HS, HB, HSTAT)
    a("s_waitcnt vmcnt(0)")
    a("s_barrier")
    br_wave(a, "eq", 11, "L_p2_f", False)
    M.flag_idx128(a, F_P2)
    a.label("L_p2_f")
    stamp(a, 13)
    br_wave(a, "ge", 9, "L_p2b_nw")
    M.w_loads(a, 1, list(range(9, 18)))
    M.c1_loads(a)
    a.label("L_p2b_nw")
    br_wave(a, "eq", 11, "L_p2b_np", False)
    a(f"s_lshl_b32 s31, s{M.S_RB32}, 9")
    a(f"s_add_u32 s31, s31, {F_P2:#x}")
    a(f"v_lshlrev_b32 v12, 7, v1")
    a(f"v_add_u32 v12, s31, v12")
    poll_flags(a, 12, 13, 0xf)
    M.zero_stats(a)
    a("s_waitcnt lgkmcnt(0)")
    a.label("L_p2b_np")
    a("s_barrier")
    br_wave(a, "ge", 9, "L_p2b_b")
    a(f"s_mul_i32 s33, s{M.S_RB32}, 9216")
    a(f"s_add_u32 s33, s33, {HB:#x}")
    p1.tile_dma(a, M.V_TD, 33, 2304, 4, M.L_TILE)
    M.row_stats_loads(a, HSTAT, M.AF)
    a("s_waitcnt vmcnt(12)")
    M.c1_sum(a)
    a("s_waitcnt vmcnt(0)")
    M.stats_finish(a, M.AF, True)
    a.label("L_p2b_b")
    a("s_barrier")
    br_wave(a, "ge", 9, "L_p2b_h")
    M.small_gemm(a, next_m=2)
    M.p2b_epilogue(a)
    a("s_waitcnt lgkmcnt(0)")
    a("s_branch L_p2b_c")
    a.label("L_p2b_h")
    br_wave(a, "eq", 9, "L_p2b_c", False)
    mlp.pk_wait(a)
    mlp.l2_warm(a, W3P, 20)
    a.label("L_p2b_c")
    a("s_barrier")
    M.coop_store(a, M.L_STG, HH, None)
    a("s_waitcnt vmcnt(0)")
    a("s_barrier")
    br_wave(a, "eq", 11, "L_p2b_f", False)
    M.flag_idx128(a, F_P2B)
    a.label("L_p2b_f")
    stamp(a, 14)
    br_wave(a, "ge", 9, "L_p3_nw")
    M.w_loads(a, 2, list(range(9, 18)))
    a.label("L_p3_nw")
    br_wave(a, "eq", 11, "L_p3_np", False)
    a(f"s_lshl_b32 s31, s{M.S_RB32}, 2")
    a(f"s_sub_u32 s31, s31, 4")
    a(f"v_add_u32 v12, s31, v1")
    a(f"v_max_i32 v12, 0, v12")
    a(f"v_min_i32 v12, 255, v12")
    a(f"v_lshlrev_b32 v12, 7, v12")
    a(f"v_add_u32 v12, {F_P2B:#x}, v12")
    poll_flags(a, 12, 13, 0xfff)
    a.label("L_p3_np")
    a("s_barrier")
    br_wave(a, "ge", 9, "L_p3_b")
    M.p3_tile_dma(a)
    a("s_waitcnt vmcnt(0)")
    a.label("L_p3_b")
    a("s_barrier")
    br_wave(a, "ge", 9, "L_p3_c")
    M.small_gemm(a)
    M.p3_epilogue(a)
    a("s_waitcnt lgkmcnt(0)")
    a.label("L_p3_c")
    a("s_barrier")
    M.coop_store(a, M.L_STG, X1, X1STAT)
    a("s_waitcnt vmcnt(0)")
    a("s_barrier")
    br_wave(a, "eq", 11, "L_p3_f", False)
    M.flag_idx128(a, F_P3)
    a.label("L_p3_f")
    stamp(a, 15)

def phase_mlp(a):
    Q = mlp
    Q.mlp_prologue(a)
    st = Stream(3, Q.DEPTH, Q.WR, p1.V_L16, Q.S_SO, 3072)
    Q.c3_loads(a)
    for u in range(2):
        for x in st.loads(u): a(x)
    br_wave(a, "eq", 11, "L_m_np", False)
    a(f"s_lshl_b32 s31, s{Q.S_RB}, 10")
    a(f"s_add_u32 s31, s31, {F_P3:#x}")
    a(f"v_lshlrev_b32 v12, 7, v1")
    a(f"v_add_u32 v12, s31, v12")
    poll_flags(a, 12, 13, 0xff)
    a.label("L_m_np")
    a("s_barrier")
    br_wave(a, "ge", 9, "L_m_nd")
    a(f"s_mul_i32 s33, s{Q.S_RB}, {64*288}")
    a(f"s_add_u32 s33, s33, {X1:#x}")
    p1.tile_dma(a, Q.V_TD, 33, 2304, 8, Q.L_X1, nt=True)
    a.label("L_m_nd")
    br_wave(a, "eq", 11, "L_m_ns", False)
    Q.row_stats(a)
    a.label("L_m_ns")
    a("s_barrier")
    br_wave(a, "eq", 10, "L_m_nw", False)
    Q.l2_warm(a, W4P, Q.XF)
    a("s_waitcnt vmcnt(0)")
    a.label("L_m_nw")
    for u in range(2, Q.DEPTH):
        for x in st.loads(u): a(x)
    a(f"s_waitcnt vmcnt({3*(Q.DEPTH-2)})")
    Q.c3_sum(a)
    br_wave(a, "eq", 11, "L_m_ns2", False)
    Q.row_stats_finish(a)
    a.label("L_m_ns2")
    for r in range(48): a(f"v_mov_b32 v{Q.ACC+r}, 0")
    a("s_waitcnt lgkmcnt(0)")
    a("s_barrier")
    stamp(a, 16)
    for x in act_reads(Q.XF, 0, 4, p1.V_XE, p1.V_XO, 0): a(x)
    gemm_stream(a, st, Q, first=True)
    stamp(a, 17)
    Q.gemm1_epilogue(a)
    a("s_waitcnt lgkmcnt(0)")
    a("s_barrier")
    stamp(a, 18)
    p1.frag_addrs(a, p1.V_XE, p1.V_XO, Q.L_G)
    for r in range(48): a(f"v_mov_b32 v{Q.ACC+r}, 0")
    for x in act_reads(Q.XF, 0, 4, p1.V_XE, p1.V_XO, 0): a(x)
    gemm_stream(a, st, Q, first=False)
    stamp(a, 19)
    Q.gemm2_epilogue(a)
    a("s_waitcnt lgkmcnt(0)")
    a("s_barrier")
    Q.part_store(a)
    a("s_waitcnt vmcnt(0)")
    a("s_barrier")
    stamp(a, 20)
    br_wave(a, "eq", 11, "L_m_nf", False)
    a(f"s_lshl_b32 s31, s{Q.S_RB}, 3")
    a(f"s_add_u32 s31, s31, s{Q.S_J8}")
    a("s_lshl_b32 s31, s31, 7")
    set_flag(a, F_MLP, 31, 12, 13)
    a(f"s_lshl_b32 s31, s{Q.S_RB}, 10")
    a(f"s_add_u32 s31, s31, {F_MLP:#x}")
    a(f"v_lshlrev_b32 v12, 7, v1")
    a(f"v_add_u32 v12, s31, v12")
    poll_flags(a, 12, 13, 0xff)
    a.label("L_m_nf")
    a("s_barrier")
    stamp(a, 21)
    Q.final_reduce(a)
    stamp(a, 22)

def gemm_stream(a, st, Q, first):
    D, NB, NR = st.D, st.NB, 4
    base = 0 if first else 18
    acc_of = lambda t, rt: Q.ACC + 16 * t + 4 * rt
    for ks in range(18):
        n = base + ks
        slot = n % D
        cur = ks & 1; nxt = 1 - cur
        mf = []
        for rt in range(NR):
            for t in range(NB):
                x = Q.XF + 4 * (cur * NR + rt); w = st.reg(slot, t)
                mf.append(mfma(acc_of(t, rt), w, x))
        remaining = 36 - (n + 1)
        a(f"s_waitcnt vmcnt({min(D - 1, remaining)*NB}) lgkmcnt(0)")
        if ks < 17:
            bse = p1.V_XO if (ks + 1) & 1 else p1.V_XE
            rd = [f"ds_read_b128 v[{Q.XF+4*(nxt*NR+rt)}:{Q.XF+4*(nxt*NR+rt)+3}], v{bse} offset:{rt*18432 + ((ks+1)>>1)*128}" for rt in range(NR)]
        else: rd = []
        interleave(a, mf, rd, lead=1, per=2)
        if n + D < 36:
            if n + D == 18:
                a(f"s_add_u32 s{st.soff}, s{st.soff}, {W4P - W3P - 18*3072:#x}")
            for x in st.loads(slot): a(x)

PRELUDE = None
RT = False
def build(stop_after="ALL"):
    a = Asm()
    K = NAME + "_kernel"
    a.label(K)
    p1.prologue(a)
    if common.STAMP_ON:
        for i in range(common.NSTAMP): a(f"s_mov_b32 s{74+i}, 0")
    stamp(a, 0)
    if common.STAMP_ON or RT:
        a("s_memrealtime s[100:101]"); a("s_waitcnt lgkmcnt(0)"); a("s_mov_b32 s99, s100")
    phase_p01(a, K)
    phases_mid(a, stop_after)
    phase_mlp(a)
    if common.STAMP_ON:
        a("s_memrealtime s[100:101]"); a("s_waitcnt lgkmcnt(0)"); a("s_mov_b32 s98, s100")
    if RT:
        a("s_cmp_eq_u32 s3, 0"); a("s_cbranch_scc0 L_exit")
        a("s_memrealtime s[100:101]")
        a("s_load_dwordx2 s[4:5], s[0:1], 72")
        a("s_waitcnt lgkmcnt(0)")
        a("s_mov_b64 exec, 1")
        a("v_mov_b32 v2, s100"); a("v_mov_b32 v3, 0")
        a("global_atomic_umax v3, v2, s[4:5] sc1")
        a("s_not_b32 s99, s99")
        a("v_mov_b32 v2, s99")
        a("global_atomic_umax v3, v2, s[4:5] offset:4 sc1")
    stamp_dump(a)
    a.label("L_exit")
    a("s_endpgm")
    a.label("L_code_end")
    n = a.fix_hazards()
    errs = a.check_waits([K])
    for e in errs: print("WAITCHECK:", e)
    hdr = open("cdna_kernels/" + NAME + ".s.ref").read().split("; Override launch")[0]
    txt = hdr + "; @launch grid=(256,1,1) block=(768,1,1) lds=163840\n"
    txt += '.amdgcn_target "amdgcn-amd-amdhsa--gfx950"\n.text\n'
    txt += f".globl {K}\n.p2align 8\n.type {K},@function\n"
    txt += a.text()
    txt += f""".section .rodata,"a"
.p2align 6
.amdhsa_kernel {K}
  .amdhsa_next_free_vgpr 168
  .amdhsa_next_free_sgpr 102
  .amdhsa_accum_offset 168
  .amdhsa_group_segment_fixed_size 0
  .amdhsa_kernarg_size 88
  .amdhsa_user_sgpr_count 2
  .amdhsa_user_sgpr_kernarg_segment_ptr 1
  .amdhsa_system_sgpr_workgroup_id_x 1
  .amdhsa_float_denorm_mode_32 3
.end_amdhsa_kernel
"""
    return txt, n

if __name__ == "__main__":
    if "--stamp" in sys.argv:
        common.STAMP_ON = True; sys.argv.remove("--stamp")
    if "--rt" in sys.argv:
        RT = True; sys.argv.remove("--rt")
    stop = sys.argv[1] if len(sys.argv) > 1 else "ALL"
    out = sys.argv[2] if len(sys.argv) > 2 else "k.s"
    txt, n = build(stop)
    open(out, "w").write(txt)
    print("nops inserted:", n, "bytes:", len(txt))
```

```python
import sys
sys.path.insert(0, "gen")
from common import *
import common, p1, helpers, mid, mlp
from common import stamp, stamp_dump
from gemm import *

def br_wave(a, cond, val, target, taken_if=True):
    a(f"s_cmp_{cond}_u32 s3, {val}")
    a(f"s_cbranch_scc{1 if taken_if else 0} {target}")

def phase_p01(a, K):
    br_wave(a, "ge", 8, "L_p0_help")
    p1.p0_ln(a)
    a("s_barrier")
    a("s_waitcnt vmcnt(0) lgkmcnt(0)")
    p1.finish_epoch(a)
    stamp(a, 3)
    a("s_barrier")
    br_wave(a, "eq", 0, "L_p0_nf", False)
    a("s_lshl_b32 s31, s2, 7")
    set_flag(a, F_P0D, 31)
    p1.p1_wait_p0(a)
    a.label("L_p0_nf")
    a("s_barrier")
    br_wave(a, "ge", 4, "L_p1_q")
    p1.p1_kv(a)
    stamp(a, 6)
    a("s_branch L_p1_end")
    a.label("L_p1_q")
    p1.p1_q(a)
    a("s_setprio 0")
    stamp(a, 6)
    a("s_branch L_p1_end")
    a.label("L_p0_help")
    a(f"v_lshlrev_b32 v12, 2, v1")
    a(f"v_add_u32 v12, {p1.LFLAG}, v12")
    a("v_mov_b32 v13, 0")
    a("s_mov_b64 exec, 0xf")
    a("ds_write_b32 v12, v13")
    a("s_mov_b64 exec, -1")
    a("s_cmp_ge_u32 s2, 144")
    a("s_cbranch_scc1 L_p0_small")
    helpers.p0_issue(a)
    a("s_waitcnt lgkmcnt(0)")
    p1.finish_epoch(a)
    a("s_barrier")
    helpers.p0_finish(a)
    a("s_barrier")
    a(f"s_mov_b32 s73, 0")
    a("s_branch L_p0_j")
    a.label("L_p0_small")
    a("s_waitcnt lgkmcnt(0)")
    p1.finish_epoch(a)
    a(f"s_mov_b32 s73, 0")
    br_wave(a, "eq", 8, "L_p0_n8", False)
    helpers.code_prefetch(a, K, "L_code_end")
    helpers.zero_kv(a)
    a.label("L_p0_n8")
    br_wave(a, "eq", 11, "L_p0_n11", False)
    helpers.job_setup_small(a, LDS_A1 + 40960)
    a(f"s_mov_b32 s73, s{helpers.S_ACT}")
    a.label("L_p0_n11")
    a("s_barrier")
    a("s_cmp_eq_u32 s73, 0"); a("s_cbranch_scc1 L_p0_nl")
    helpers.job_loads(a)
    a.label("L_p0_nl")
    a("s_barrier")
    a.label("L_p0_j")
    br_wave(a, "eq", 9, "L_p0_j3")
    br_wave(a, "eq", 10, "L_p0_j4")
    a("s_branch L_p0_jx")
    a.label("L_p0_j3")
    helpers.job_setup_big(a, 3, LDS_A1 + 45568)
    a("s_branch L_p0_jl")
    a.label("L_p0_j4")
    helpers.job_setup_big(a, 4, LDS_A1 + 50176)
    a.label("L_p0_jl")
    a(f"s_mov_b32 s73, s{helpers.S_ACT}")
    a("s_cmp_eq_u32 s73, 0"); a("s_cbranch_scc1 L_p0_jx")
    helpers.job_loads(a)
    a.label("L_p0_jx")
    a("s_barrier")
    br_wave(a, "eq", 8, "L_p1_h8", False)
    p1.p1_mapping(a)
    p1.p1_xn_dma(a)
    a.label("L_p1_h8")
    a("s_barrier")
    br_wave(a, "eq", 8, "L_p1_h8b", False)
    a("s_waitcnt vmcnt(0)")
    a.label("L_p1_h8b")
    a("s_barrier")
    a("s_cmp_eq_u32 s73, 0"); a("s_cbranch_scc1 L_p1_end")
    helpers.job_run(a)
    stamp(a, 6)
    br_wave(a, "eq", 11, "L_p1_end")
    a("s_branch L_p1_end2")
    a.label("L_p1_end")
    a("s_waitcnt vmcnt(0)")
    a.label("L_p1_end2")
    a("s_waitcnt lgkmcnt(0)")
    stamp(a, 7)
    a("s_barrier")
    stamp(a, 8)
    br_wave(a, "eq", 0, "L_p1_nf", False)
    a(f"s_lshl_b32 s31, s{p1.S_J}, 7")
    a(f"s_lshl_b32 s32, s{p1.S_J}, 10")
    arrive_last(a, C_P1, 31, 32, F_G, 32, 8)
    a.label("L_p1_nf")
    br_wave(a, "lt", 9, "L_p1_flagged")
    br_wave(a, "eq", 11, "L_p1_flagged")
    a("s_cmp_eq_u32 s73, 0"); a("s_cbranch_scc1 L_p1_flagged")
    a("s_waitcnt vmcnt(0)")
    a(f"s_lshl_b32 s31, s{S_XCD}, 7")
    arrive_last(a, C_PK, 31, 54, F_PKD, 31, 1)
    a.label("L_p1_flagged")

def phases_mid(a, stop_after):
    M = mid
    M.mid_mapping(a)
    a(f"v_lshlrev_b32 v{p1.V_L16}, 4, v1")
    M.ep_addrs(a)
    p1.tile_dma_voff(a, M.V_TD, "s4")
    br_wave(a, "eq", 11, "L_p2_np", False)
    M.zero_stats(a)
    a(f"v_lshlrev_b32 v12, 10, v1")
    a(f"s_lshl_b32 s31, s{S_XCD}, 7")
    a(f"s_add_u32 s31, s31, {F_G:#x}")
    a(f"v_add_u32 v12, s31, v12")
    poll_flags(a, 12, 13, 0xff)
    a("s_cmp_eq_u32 s2, 0"); a("s_cbranch_scc0 L_p2_ne")
    a("s_mov_b32 s31, 0")
    set_flag(a, WS_EPOCH, 31, 12, 13)
    a.label("L_p2_ne")
    a("s_waitcnt lgkmcnt(0)")
    a.label("L_p2_np")
    stamp(a, 10)
    a("s_barrier")
    br_wave(a, "eq", 11, "L_p2_o1")
    M.p2_ostage(a)
    a.label("L_p2_o1")
    a("s_barrier")
    br_wave(a, "eq", 11, "L_p2_b")
    br_wave(a, "ge", 9, "L_p2_w9")
    M.w_loads(a, 0, list(range(18)))
    M.p2_ostage_compute(a, 18)
    M.xres_loads(a, p1.XS, None, M.XR)
    a("s_waitcnt lgkmcnt(0)")
    a("s_branch L_p2_b")
    a.label("L_p2_w9")
    M.p2_ostage_compute(a, 0)
    a("s_waitcnt lgkmcnt(0)")
    a.label("L_p2_b")
    stamp(a, 11)
    a("s_barrier")
    br_wave(a, "ge", 9, "L_p2_c")
    a("s_waitcnt vmcnt(0)")
    M.small_gemm(a, next_m=1)
    M.p2_epilogue(a)
    a("s_waitcnt lgkmcnt(0)")
    a.label("L_p2_c")
    stamp(a, 12)
    a("s_barrier")
    M.coop_store(a, M.L_HS, HB, HSTAT)
    a("s_waitcnt vmcnt(0)")
    a("s_barrier")
    br_wave(a, "eq", 11, "L_p2_f", False)
    M.flag_idx128(a, F_P2)
    a.label("L_p2_f")
    stamp(a, 13)
    br_wave(a, "ge", 9, "L_p2b_nw")
    M.w_loads(a, 1, list(range(9, 18)))
    M.c1_loads(a)
    a.label("L_p2b_nw")
    br_wave(a, "eq", 11, "L_p2b_np", False)
    a(f"s_lshl_b32 s31, s{M.S_RB32}, 9")
    a(f"s_add_u32 s31, s31, {F_P2:#x}")
    a(f"v_lshlrev_b32 v12, 7, v1")
    a(f"v_add_u32 v12, s31, v12")
    poll_flags(a, 12, 13, 0xf)
    M.zero_stats(a)
    a("s_waitcnt lgkmcnt(0)")
    a.label("L_p2b_np")
    a("s_barrier")
    br_wave(a, "ge", 9, "L_p2b_b")
    a(f"s_mul_i32 s33, s{M.S_RB32}, 9216")
    a(f"s_add_u32 s33, s33, {HB:#x}")
    p1.tile_dma(a, M.V_TD, 33, 2304, 4, M.L_TILE)
    M.row_stats_loads(a, HSTAT, M.AF)
    a("s_waitcnt vmcnt(12)")
    M.c1_sum(a)
    a("s_waitcnt vmcnt(0)")
    M.stats_finish(a, M.AF, True)
    a.label("L_p2b_b")
    a("s_barrier")
    br_wave(a, "ge", 9, "L_p2b_h")
    M.small_gemm(a, next_m=2)
    M.p2b_epilogue(a)
    a("s_waitcnt lgkmcnt(0)")
    a("s_branch L_p2b_c")
    a.label("L_p2b_h")
    br_wave(a, "eq", 9, "L_p2b_c", False)
    mlp.pk_wait(a)
    mlp.l2_warm(a, W3P, 20)
    a.label("L_p2b_c")
    a("s_barrier")
    M.coop_store(a, M.L_STG, HH, None)
    a("s_waitcnt vmcnt(0)")
    a("s_barrier")
    br_wave(a, "eq", 11, "L_p2b_f", False)
    M.flag_idx128(a, F_P2B)
    a.label("L_p2b_f")
    stamp(a, 14)
    br_wave(a, "ge", 9, "L_p3_nw")
    M.w_loads(a, 2, list(range(9, 18)))
    a.label("L_p3_nw")
    br_wave(a, "eq", 11, "L_p3_np", False)
    a(f"s_lshl_b32 s31, s{M.S_RB32}, 2")
    a(f"s_sub_u32 s31, s31, 4")
    a(f"v_add_u32 v12, s31, v1")
    a(f"v_max_i32 v12, 0, v12")
    a(f"v_min_i32 v12, 255, v12")
    a(f"v_lshlrev_b32 v12, 7, v12")
    a(f"v_add_u32 v12, {F_P2B:#x}, v12")
    poll_flags(a, 12, 13, 0xfff)
    a.label("L_p3_np")
    a("s_barrier")
    br_wave(a, "ge", 9, "L_p3_b")
    M.p3_tile_dma(a)
    a("s_waitcnt vmcnt(0)")
    a.label("L_p3_b")
    a("s_barrier")
    br_wave(a, "ge", 9, "L_p3_c")
    M.small_gemm(a)
    M.p3_epilogue(a)
    a("s_waitcnt lgkmcnt(0)")
    a.label("L_p3_c")
    a("s_barrier")
    M.coop_store(a, M.L_STG, X1, X1STAT)
    a("s_waitcnt vmcnt(0)")
    a("s_barrier")
    br_wave(a, "eq", 11, "L_p3_f", False)
    M.flag_idx128(a, F_P3)
    a.label("L_p3_f")
    stamp(a, 15)

def phase_mlp(a):
    Q = mlp
    Q.mlp_prologue(a)
    st = Stream(3, Q.DEPTH, Q.WR, p1.V_L16, Q.S_SO, 3072)
    Q.c3_loads(a)
    for u in range(2):
        for x in st.loads(u): a(x)
    br_wave(a, "eq", 11, "L_m_np", False)
    a(f"s_lshl_b32 s31, s{Q.S_RB}, 10")
    a(f"s_add_u32 s31, s31, {F_P3:#x}")
    a(f"v_lshlrev_b32 v12, 7, v1")
    a(f"v_add_u32 v12, s31, v12")
    poll_flags(a, 12, 13, 0xff)
    a.label("L_m_np")
    a("s_barrier")
    br_wave(a, "ge", 9, "L_m_nd")
    a(f"s_mul_i32 s33, s{Q.S_RB}, {64*288}")
    a(f"s_add_u32 s33, s33, {X1:#x}")
    p1.tile_dma(a, Q.V_TD, 33, 2304, 8, Q.L_X1, nt=True)
    a.label("L_m_nd")
    br_wave(a, "eq", 11, "L_m_ns", False)
    Q.row_stats(a)
    a.label("L_m_ns")
    a("s_barrier")
    br_wave(a, "eq", 10, "L_m_nw", False)
    Q.l2_warm(a, W4P, Q.XF)
    a("s_waitcnt vmcnt(0)")
    a.label("L_m_nw")
    for u in range(2, Q.DEPTH):
        for x in st.loads(u): a(x)
    a(f"s_waitcnt vmcnt({3*(Q.DEPTH-2)})")
    Q.c3_sum(a)
    br_wave(a, "eq", 11, "L_m_ns2", False)
    Q.row_stats_finish(a)
    a.label("L_m_ns2")
    for r in range(48): a(f"v_mov_b32 v{Q.ACC+r}, 0")
    a("s_waitcnt lgkmcnt(0)")
    a("s_barrier")
    stamp(a, 16)
    for x in act_reads(Q.XF, 0, 4, p1.V_XE, p1.V_XO, 0): a(x)
    gemm_stream(a, st, Q, first=True)
    stamp(a, 17)
    Q.gemm1_epilogue(a)
    a("s_waitcnt lgkmcnt(0)")
    a("s_barrier")
    stamp(a, 18)
    p1.frag_addrs(a, p1.V_XE, p1.V_XO, Q.L_G)
    for r in range(48): a(f"v_mov_b32 v{Q.ACC+r}, 0")
    for x in act_reads(Q.XF, 0, 4, p1.V_XE, p1.V_XO, 0): a(x)
    gemm_stream(a, st, Q, first=False)
    stamp(a, 19)
    Q.gemm2_epilogue(a)
    a("s_waitcnt lgkmcnt(0)")
    a("s_barrier")
    Q.part_store(a)
    a("s_waitcnt vmcnt(0)")
    a("s_barrier")
    stamp(a, 20)
    br_wave(a, "eq", 11, "L_m_nf", False)
    a(f"s_lshl_b32 s31, s{Q.S_RB}, 3")
    a(f"s_add_u32 s31, s31, s{Q.S_J8}")
    a("s_lshl_b32 s31, s31, 7")
    set_flag(a, F_MLP, 31, 12, 13)
    a(f"s_lshl_b32 s31, s{Q.S_RB}, 10")
    a(f"s_add_u32 s31, s31, {F_MLP:#x}")
    a(f"v_lshlrev_b32 v12, 7, v1")
    a(f"v_add_u32 v12, s31, v12")
    poll_flags(a, 12, 13, 0xff)
    a.label("L_m_nf")
    a("s_barrier")
    stamp(a, 21)
    Q.final_reduce(a)
    stamp(a, 22)

def gemm_stream(a, st, Q, first):
    D, NB, NR = st.D, st.NB, 4
    base = 0 if first else 18
    acc_of = lambda t, rt: Q.ACC + 16 * t + 4 * rt
    for ks in range(18):
        n = base + ks
        slot = n % D
        cur = ks & 1; nxt = 1 - cur
        mf = []
        for rt in range(NR):
            for t in range(NB):
                x = Q.XF + 4 * (cur * NR + rt); w = st.reg(slot, t)
                mf.append(mfma(acc_of(t, rt), w, x))
        remaining = 36 - (n + 1)
        a(f"s_waitcnt vmcnt({min(D - 1, remaining)*NB}) lgkmcnt(0)")
        if ks < 17:
            bse = p1.V_XO if (ks + 1) & 1 else p1.V_XE
            rd = [f"ds_read_b128 v[{Q.XF+4*(nxt*NR+rt)}:{Q.XF+4*(nxt*NR+rt)+3}], v{bse} offset:{rt*18432 + ((ks+1)>>1)*128}" for rt in range(NR)]
        else: rd = []
        interleave(a, mf, rd, lead=1, per=2)
        if n + D < 36:
            if n + D == 18:
                a(f"s_add_u32 s{st.soff}, s{st.soff}, {W4P - W3P - 18*3072:#x}")
            for x in st.loads(slot): a(x)

TLB = False
def tlb_touch(a):
    L = a.newlabel("Ltlb")
    br_wave(a, "eq", 10, L, False)
    a("s_load_dwordx4 s[36:39], s[0:1], 48")
    a("s_load_dwordx4 s[40:43], s[0:1], 32")
    a("s_load_dwordx2 s[44:45], s[0:1], 16")
    a("v_lshlrev_b32 v12, 21, v1")
    a("s_mov_b64 exec, 0xffffff")
    a(f"buffer_load_dword v164, v12, s[{SRD_WS}:{SRD_WS+3}], 0 offen")
    a("s_mov_b64 exec, 0x3")
    a(f"buffer_load_dword v165, v12, s[{SRD_OUT}:{SRD_OUT+3}], 0 offen")
    a("s_waitcnt lgkmcnt(0)")
    a("s_mov_b64 exec, 0x7")
    a("global_load_dword v166, v12, s[36:37]")
    a("global_load_dword v167, v12, s[38:39]")
    a("s_mov_b64 exec, 0x1")
    a("global_load_dword v163, v12, s[40:41]")
    a("global_load_dword v162, v12, s[42:43]")
    a("global_load_dword v161, v12, s[44:45]")
    a("s_mov_b64 exec, -1")
    a(f"s_load_dword s{S_T}, s[34:35], 0")
    a.label(L)

PRELUDE = None
RT = False
def build(stop_after="ALL"):
    a = Asm()
    K = NAME + "_kernel"
    a.label(K)
    p1.prologue(a)
    if common.STAMP_ON:
        for i in range(common.NSTAMP): a(f"s_mov_b32 s{74+i}, 0")
    stamp(a, 0)
    if common.STAMP_ON or RT:
        a("s_memrealtime s[100:101]"); a("s_waitcnt lgkmcnt(0)"); a("s_mov_b32 s99, s100")
    if TLB: tlb_touch(a)
    phase_p01(a, K)
    phases_mid(a, stop_after)
    phase_mlp(a)
    if common.STAMP_ON:
        a("s_memrealtime s[100:101]"); a("s_waitcnt lgkmcnt(0)"); a("s_mov_b32 s98, s100")
    if RT:
        a("s_cmp_eq_u32 s3, 0"); a("s_cbranch_scc0 L_exit")
        a("s_memrealtime s[100:101]")
        a("s_load_dwordx2 s[4:5], s[0:1], 72")
        a("s_waitcnt lgkmcnt(0)")
        a("s_mov_b64 exec, 1")
        a("v_mov_b32 v2, s100"); a("v_mov_b32 v3, 0")
        a("global_atomic_umax v3, v2, s[4:5] sc1")
        a("s_not_b32 s99, s99")
        a("v_mov_b32 v2, s99")
        a("global_atomic_umax v3, v2, s[4:5] offset:4 sc1")
    stamp_dump(a)
    a.label("L_exit")
    a("s_endpgm")
    a.label("L_code_end")
    n = a.fix_hazards()
    errs = a.check_waits([K])
    for e in errs: print("WAITCHECK:", e)
    hdr = open("cdna_kernels/" + NAME + ".s.ref").read().split("; Override launch")[0]
    txt = hdr + "; @launch grid=(256,1,1) block=(768,1,1) lds=163840\n"
    txt += '.amdgcn_target "amdgcn-amd-amdhsa--gfx950"\n.text\n'
    txt += f".globl {K}\n.p2align 8\n.type {K},@function\n"
    txt += a.text()
    txt += f""".section .rodata,"a"
.p2align 6
.amdhsa_kernel {K}
  .amdhsa_next_free_vgpr 168
  .amdhsa_next_free_sgpr 102
  .amdhsa_accum_offset 168
  .amdhsa_group_segment_fixed_size 0
  .amdhsa_kernarg_size 88
  .amdhsa_user_sgpr_count 2
  .amdhsa_user_sgpr_kernarg_segment_ptr 1
  .amdhsa_system_sgpr_workgroup_id_x 1
  .amdhsa_float_denorm_mode_32 3
.end_amdhsa_kernel
"""
    return txt, n

if __name__ == "__main__":
    if "--stamp" in sys.argv:
        common.STAMP_ON = True; sys.argv.remove("--stamp")
    if "--tlb" in sys.argv:
        TLB = True; sys.argv.remove("--tlb")
    if "--rt" in sys.argv:
        RT = True; sys.argv.remove("--rt")
    stop = sys.argv[1] if len(sys.argv) > 1 else "ALL"
    out = sys.argv[2] if len(sys.argv) > 2 else "k.s"
    txt, n = build(stop)
    open(out, "w").write(txt)
    print("nops inserted:", n, "bytes:", len(txt))
```

```python
from asmlib import *
NAME = "sequential_preLN__linear_attn_block__mixer_s_mlp__prompt"
WS_EPOCH = 0x0
F_P0D = 0x08000
F_P2  = 0x10000
F_P2B = 0x18000
F_P3  = 0x20000
F_MLP = 0x28000
C_P1  = 0x3C000
C_PK  = 0x3C400
C_PK4 = 0x3CC00
F_PKD4 = 0x3F400
C_SM  = 0x3C800
F_SMD = 0x70000
F_XN  = 0x72000
F_G   = 0x3D000
F_PKD = 0x3F000
KV    = 0x30000
KV_HEAD = 1536
HSTAT = 0x40000
X1STAT= 0x50000
C1P   = 0x60000
C3P   = 0x62000
PQ    = 0x100000
HB    = 0x340000
HH    = 0x580000
X1    = 0x7C0000
WSP   = 0xA00000
WSP_SZ = 663552
W3P   = 0xC00000
W4P   = 0x1200000
WQP   = 0x1720000
XN    = 0x1960000
PART  = 0x1C00000
WS_SIZE = 0x4000000
LDS_A0 = 0
LDS_A1 = 73728
LDS_MISC = 147456
LDS_TOTAL = 163840
S_WG = 2; S_WAVE = 3
SRD_X = 8; SRD_W = 12; SRD_WS = 16; SRD_OUT = 20; SRD_SRC = 24
S_T = 28; S_XCD = 29; S_LOC = 30
S_TMP = 31
M_Q0 = 64; M_Q1 = 66; M_Q2 = 68; M_Q3 = 70
S_TO = 72
LOG2E = 0x3fb8aa3b
EPS_1EM5 = 0x3727c5ac
EPS_1EM6 = 0x358637bd
ONES_BF16 = 0x3f803f80
import struct
def f2u(x): return struct.unpack("<I", struct.pack("<f", x))[0]

def srd(a, sreg, ptr_lo, size):
    a(f"s_mov_b32 s{sreg}, s{ptr_lo}")
    a(f"s_mov_b32 s{sreg+1}, s{ptr_lo+1}")
    a(f"s_mov_b32 s{sreg+2}, {size:#x}")
    a(f"s_mov_b32 s{sreg+3}, 0x20000")

def set_flag(a, base_const, s_index_off, vtmp=2, vtmp2=3):
    a(f"s_mov_b64 exec, 1")
    a(f"v_mov_b32 v{vtmp}, s{S_T}")
    a(f"v_mov_b32 v{vtmp2}, {base_const:#x}")
    a(f"buffer_store_dword v{vtmp}, v{vtmp2}, s[{SRD_WS}:{SRD_WS+3}], s{s_index_off} offen sc1")
    a(f"s_mov_b64 exec, -1")

def poll_flags(a, vaddr, vval, nlanes_mask_lo, nlanes_mask_hi=0, ndw=1, sleep=2):
    L = a.newlabel("Lpoll"); D = a.newlabel("Lpolld")
    a(f"s_mov_b32 exec_lo, {nlanes_mask_lo:#x}")
    a(f"s_mov_b32 exec_hi, {nlanes_mask_hi:#x}")
    a(f"s_mov_b32 s{S_TO}, 0x40000")
    a.label(L)
    if ndw == 1:
        a(f"buffer_load_dword v{vval}, v{vaddr}, s[{SRD_WS}:{SRD_WS+3}], 0 offen sc1")
        a("s_waitcnt vmcnt(0)")
        a(f"v_cmp_ne_u32 vcc, s{S_T}, v{vval}")
    else:
        assert ndw == 4
        a(f"buffer_load_dwordx4 v[{vval}:{vval+3}], v{vaddr}, s[{SRD_WS}:{SRD_WS+3}], 0 offen sc1")
        a("s_waitcnt vmcnt(0)")
        a(f"v_xor_b32 v{vval}, s{S_T}, v{vval}")
        a(f"v_xor_b32 v{vval+1}, s{S_T}, v{vval+1}")
        a(f"v_xor_b32 v{vval+2}, s{S_T}, v{vval+2}")
        a(f"v_xor_b32 v{vval+3}, s{S_T}, v{vval+3}")
        a(f"v_or_b32 v{vval}, v{vval}, v{vval+1}")
        a(f"v_or3_b32 v{vval}, v{vval}, v{vval+2}, v{vval+3}")
        a(f"v_cmp_ne_u32 vcc, 0, v{vval}")
    a(f"s_cbranch_vccz {D}")
    a(f"s_sub_u32 s{S_TO}, s{S_TO}, 1")
    a(f"s_cbranch_scc1 {D}")
    a(f"s_sleep {sleep}")
    a(f"s_branch {L}")
    a.label(D)
    a("s_mov_b64 exec, -1")

STAMPS = 0x80000
NSTAMP = 26
STAMP_ON = False
def stamp(a, idx):
    if not STAMP_ON: return
    assert idx < NSTAMP
    a(f"s_memtime s[100:101]")
    a("s_waitcnt lgkmcnt(0)")
    a(f"s_mov_b32 s{74+idx}, s100")
def stamp_dump(a):
    if not STAMP_ON: return
    a("s_mul_i32 s31, s2, 12")
    a("s_add_u32 s31, s31, s3")
    a("s_lshl_b32 s31, s31, 7")
    a(f"s_add_u32 s31, s31, {STAMPS:#x}")
    a("s_mov_b64 exec, 1")
    a("v_mov_b32 v3, 0")
    for i in range(NSTAMP):
        a(f"v_mov_b32 v2, s{74+i}")
        a(f"buffer_store_dword v2, v3, s[{SRD_WS}:{SRD_WS+3}], s31 offen offset:{4*i}")
    a("s_mov_b64 exec, -1")

def arrive(a, base_const, s_off, vt=12):
    a("s_mov_b64 exec, 1")
    a(f"v_mov_b32 v{vt}, 1")
    a(f"v_mov_b32 v{vt+1}, {base_const:#x}")
    a(f"buffer_atomic_add v{vt}, v{vt+1}, s[{SRD_WS}:{SRD_WS+3}], s{s_off} offen sc1")
    a("s_mov_b64 exec, -1")

def poll_counters(a, vaddr, vval, mask_lo, target, sleep=2):
    L = a.newlabel("Lpc"); D = a.newlabel("Lpcd")
    a(f"s_mov_b32 exec_lo, {mask_lo:#x}")
    a(f"s_mov_b32 exec_hi, 0")
    a(f"s_mov_b32 s{S_TO}, 0x40000")
    a.label(L)
    a(f"buffer_load_dword v{vval}, v{vaddr}, s[{SRD_WS}:{SRD_WS+3}], 0 offen sc1")
    a("s_waitcnt vmcnt(0)")
    a(f"v_cmp_ne_u32 vcc, {target}, v{vval}")
    a(f"s_cbranch_vccz {D}")
    a(f"s_sub_u32 s{S_TO}, s{S_TO}, 1")
    a(f"s_cbranch_scc1 {D}")
    a(f"s_sleep {sleep}")
    a(f"s_branch {L}")
    a.label(D)
    a("s_mov_b64 exec, -1")

def arrive_last(a, cnt_base, s_off, target, flag_base, s_flag_off, nrep, vt=12, target_sreg=None):
    L = a.newlabel("Larr")
    a("s_mov_b64 exec, 1")
    a(f"v_mov_b32 v{vt}, 1")
    a(f"v_mov_b32 v{vt+1}, {cnt_base:#x}")
    a(f"buffer_atomic_add v{vt}, v{vt+1}, s[{SRD_WS}:{SRD_WS+3}], s{s_off} offen sc0 sc1")
    a("s_waitcnt vmcnt(0)")
    a(f"v_readfirstlane_b32 s72, v{vt}")
    a("s_mov_b64 exec, -1")
    if target_sreg is None: a(f"s_cmp_eq_u32 s72, {target-1}")
    else:
        a("s_add_u32 s72, s72, 1"); a(f"s_cmp_eq_u32 s72, s{target_sreg}")
    a(f"s_cbranch_scc0 {L}")
    a(f"s_mov_b64 exec, {(1 << nrep) - 1:#x}")
    a(f"v_lshlrev_b32 v{vt+1}, 7, v1")
    a(f"v_add_u32 v{vt+1}, {flag_base:#x}, v{vt+1}")
    a(f"v_mov_b32 v{vt}, s{S_T}")
    a(f"buffer_store_dword v{vt}, v{vt+1}, s[{SRD_WS}:{SRD_WS+3}], s{s_flag_off} offen sc1")
    a("s_mov_b64 exec, -1")
    a.label(L)
```

```python
from common import *
from gemm import *
import p1
from p1 import XS, frag_addrs, tile_dma_voff, tile_dma, V_T0, V_L16, V_XE, V_XO

S_RB32 = 61; S_S4 = 62; S_IDX = 63
L_TILE = 0
L_HS = 36864
L_STG = 46080
L_STAT = 55296
L_RST = 57600
L_C1 = 58112

V_TD = 4
V_EP = 5
V_ST = 6
AF = 20
AC = 52
XR = 60
MS = 64
WB = 96
def wreg(ks): return WB + 4 * ks

def mid_mapping(a):
    a(f"s_lshl_b32 s{S_RB32}, s{S_XCD}, 3")
    a(f"s_lshr_b32 s31, s{S_LOC}, 2")
    a(f"s_add_u32 s{S_RB32}, s{S_RB32}, s31")
    a(f"s_and_b32 s{S_S4}, s{S_LOC}, 3")
    a(f"s_lshl_b32 s{S_IDX}, s{S_RB32}, 2")
    a(f"s_add_u32 s{S_IDX}, s{S_IDX}, s{S_S4}")

def w_loads(a, m, ks_list):
    a(f"s_mul_i32 s31, s{S_S4}, 9")
    a(f"s_add_u32 s31, s31, s3")
    a(f"s_mul_i32 s31, s31, {18*1024}")
    a(f"s_add_u32 s31, s31, {WSP + m*WSP_SZ + ks_list[0]*1024:#x}")
    for n, ks in enumerate(ks_list):
        r = wreg(ks)
        a(f"buffer_load_dwordx4 v[{r}:{r+3}], v{V_L16}, {WSR}, s31 offen offset:{(n%4)*1024} sc1")
        if n % 4 == 3: a("s_add_u32 s31, s31, 4096")

def w_base(a, m_idx, sreg):
    a(f"s_mul_i32 s{sreg}, s{S_S4}, 9")
    a(f"s_add_u32 s{sreg}, s{sreg}, s3")
    a(f"s_mul_i32 s{sreg}, s{sreg}, {18*1024}")
    a(f"s_add_u32 s{sreg}, s{sreg}, {WSP + m_idx*WSP_SZ:#x}")

def small_gemm(a, next_m=None):
    frag_addrs(a, V_XE, V_XO, L_TILE)
    if next_m is not None: w_base(a, next_m, 40)
    def rd(ks):
        base = V_XO if ks & 1 else V_XE
        s = AF + 8 * (ks % 4)
        return [f"ds_read_b128 v[{s+4*rt}:{s+4*rt+3}], v{base} offset:{rt*18432 + (ks>>1)*128}" for rt in range(2)]
    for ks in range(3):
        for x in rd(ks): a(x)
    for ks in range(18):
        if ks + 3 < 18:
            for x in rd(ks + 3): a(x)
            a("s_waitcnt lgkmcnt(6)")
        else:
            a(f"s_waitcnt lgkmcnt({2*(17-ks)})")
        s = AF + 8 * (ks % 4)
        for rt in range(2):
            a(mfma(AC + 4 * rt, wreg(ks), s + 4 * rt, "0" if ks == 0 else None))
        if next_m is not None and ks % 2 == 1:
            i = ks // 2
            r = wreg(i)
            a(f"buffer_load_dwordx4 v[{r}:{r+3}], v{V_L16}, {WSR}, s40 offen offset:{(i%4)*1024} sc1")
            if i % 4 == 3: a("s_add_u32 s40, s40, 4096")

def ep_addrs(a):
    t = V_T0
    a(f"v_and_b32 v{t}, 15, v1")
    a(f"v_lshrrev_b32 v{t+1}, 4, v1")
    a(f"v_mul_u32_u24 v{V_EP}, 288, v{t}")
    a(f"v_lshl_add_u32 v{V_EP}, v{t+1}, 3, v{V_EP}")
    a(f"s_lshl_b32 s31, s3, 5")
    a(f"v_add_u32 v{V_EP}, s31, v{V_EP}")
    a(f"v_lshlrev_b32 v{V_ST}, 3, v{t}")
    a(f"s_lshl_b32 s31, s3, 8")
    a(f"s_add_u32 s31, s31, {L_STAT}")
    a(f"v_add_u32 v{V_ST}, s31, v{V_ST}")

def stats_accum(a, packs, t):
    for rt, (p0, p1_) in enumerate(packs):
        x, y = t + 2 * rt, t + 2 * rt + 1
        a(f"v_mov_b32 v{x}, 0"); a(f"v_mov_b32 v{y}, 0")
        a(f"v_dot2_f32_bf16 v{x}, v{p0}, s52, v{x}")
        a(f"v_dot2_f32_bf16 v{y}, v{p0}, v{p0}, v{y}")
        a(f"v_dot2_f32_bf16 v{x}, v{p1_}, s52, v{x}")
        a(f"v_dot2_f32_bf16 v{y}, v{p1_}, v{p1_}, v{y}")
    n = 2 * len(packs)
    for sw in ("v_permlane32_swap_b32", "v_permlane16_swap_b32"):
        for u in range(n): a(f"v_mov_b32 v{t+n+u}, v{t+u}")
        for u in range(n): a(f"{sw} v{t+u}, v{t+n+u}")
        for u in range(n): a(f"v_add_f32 v{t+u}, v{t+u}, v{t+n+u}")
    a(f"s_mov_b64 exec, s[{M_Q0}:{M_Q0+1}]")
    for rt in range(len(packs)):
        a(f"ds_write_b64 v{V_ST}, v[{t+2*rt}:{t+2*rt+1}] offset:{128*rt}")
    a("s_mov_b64 exec, -1")

def coop_store(a, lds_src, buf, stat_buf):
    L9 = a.newlabel("Lcs9"); Ld = a.newlabel("Lcsd")
    a("s_cmp_ge_u32 s3, 9")
    a(f"s_cbranch_scc1 {L9}")
    a(f"v_lshlrev_b32 v12, 4, v0")
    a(f"v_add_u32 v13, {lds_src}, v12")
    a(f"ds_read_b128 v[16:19], v13")
    a(f"s_mul_i32 s31, s{S_S4}, 589824")
    a(f"s_mul_i32 s32, s{S_RB32}, 9216")
    a("s_add_u32 s31, s31, s32")
    a(f"s_add_u32 s31, s31, {buf:#x}")
    a("s_waitcnt lgkmcnt(0)")
    a(f"buffer_store_dwordx4 v[16:19], v12, {WSR}, s31 offen sc1")
    a(f"s_branch {Ld}")
    a.label(L9)
    if stat_buf is not None:
        a("s_cmp_eq_u32 s3, 9")
        a(f"s_cbranch_scc0 {Ld}")
        a("s_mov_b32 exec_lo, -1"); a("s_mov_b32 exec_hi, 0")
        a(f"v_lshlrev_b32 v12, 3, v1")
        a(f"v_add_u32 v13, {L_STAT}, v12")
        for w in range(9):
            a(f"ds_read_b64 v[{20+2*w}:{21+2*w}], v13 offset:{256*w}")
        a(f"s_lshl_b32 s31, s{S_IDX}, 8")
        a(f"s_add_u32 s31, s31, {stat_buf:#x}")
        a("s_waitcnt lgkmcnt(0)")
        for w in range(1, 9):
            a(f"v_pk_add_f32 v[20:21], v[20:21], v[{20+2*w}:{21+2*w}]")
        a(f"buffer_store_dwordx2 v[20:21], v12, {WSR}, s31 offen sc1")
        a("s_mov_b64 exec, -1")
    a.label(Ld)

def flag_idx128(a, base):
    a(f"s_lshl_b32 s31, s{S_IDX}, 7")
    set_flag(a, base, 31, 12, 13)

RAWB = 20
NH = 3
def mfma16(d, A, B, c=None):
    c = f"v[{d}:{d+3}]" if c is None else c
    return f"v_mfma_f32_16x16x16_bf16 v[{d}:{d+3}], v[{A}:{A+1}], v[{B}:{B+1}], {c}"

L_KV = 61440
L_PQ = 110592
def p2_ostage(a):
    a.comment("---- P2 o-stage DMA ----")
    a(f"s_lshl_b32 s31, s3, 12")
    a(f"s_add_u32 s32, s31, {KV:#x}")
    a(f"s_add_u32 s31, s31, {L_KV}")
    for i in range(4):
        a(f"s_add_u32 m0, s31, {1024*i}")
        a("s_nop 0")
        a(f"buffer_load_dwordx4 v{V_L16}, {WSR}, s32 offen sc1 lds")
        a("s_add_u32 s32, s32, 1024")
    a(f"s_mul_i32 s33, s{S_RB32}, 1152")
    a(f"s_add_u32 s33, s33, {PQ:#x}")
    a(f"s_mul_i32 s31, s3, 192")
    a(f"s_mul_i32 s34, s3, 3072")
    a(f"s_add_u32 s34, s34, {L_PQ}")
    a(f"s_mov_b32 s35, 73728")
    for i in range(3):
        a(f"v_add_u32 v12, s31, v1")
        if i: a(f"v_add_u32 v12, {64*i}, v12")
        a(f"v_mul_u32_u24 v13, 58255, v12")
        a(f"v_lshrrev_b32 v13, 22, v13")
        a(f"v_mul_u32_u24 v14, 72, v13")
        a(f"v_sub_u32 v14, v12, v14")
        a(f"v_mul_lo_u32 v13, v13, s35")
        a(f"v_lshl_add_u32 v13, v14, 4, v13")
        a(f"s_add_u32 m0, s34, {1024*i}")
        a("s_nop 0")
        a(f"buffer_load_dwordx4 v13, {WSR}, s33 offen sc1 lds")

def p2_ostage_compute(a):
    S, Q, S1152, S7, MQ3 = 2, 7, 8, 9, 10
    A0A, A1A, L0A, L1A, PQA = 11, 12, 13, 14, 15
    a(f"v_and_b32 v{S}, 15, v1")
    a(f"v_lshrrev_b32 v{Q}, 4, v1")
    a(f"v_cmp_eq_u32 vcc, 3, v{Q}")
    a(f"v_cndmask_b32 v{MQ3}, 0, -1, vcc")
    a(f"v_mul_u32_u24 v{S1152}, 1152, v{S}")
    a(f"v_and_b32 v{S7}, 7, v{S}")
    a(f"v_lshlrev_b32 v{A0A}, 6, v{S}")
    a(f"v_lshl_add_u32 v{A0A}, v{Q}, 4, v{A0A}")
    a(f"v_add_u32 v{A0A}, {L_KV}, v{A0A}")
    a(f"v_and_b32 v16, 3, v{S}")
    a(f"v_cmp_eq_u32 vcc, 2, v16")
    a(f"v_cndmask_b32 v16, 19, 18, vcc")
    a(f"v_add_u32 v17, 16, v{S}")
    a(f"v_cmp_gt_u32 vcc, 2, v{S}")
    a(f"v_cndmask_b32 v16, v16, v17, vcc")
    a(f"v_lshlrev_b32 v{A1A}, 6, v16")
    a(f"v_lshl_add_u32 v{A1A}, v{Q}, 4, v{A1A}")
    a(f"v_add_u32 v{A1A}, {L_KV}, v{A1A}")
    a(f"v_cmp_eq_u32 vcc, 3, v{Q}")
    a(f"v_cndmask_b32 v17, 20, v{S}, vcc")
    a(f"v_lshlrev_b32 v{L0A}, 2, v17")
    a(f"v_add_u32 v{L0A}, {L_KV + 1280}, v{L0A}")
    a(f"v_cndmask_b32 v17, 20, v16, vcc")
    a(f"v_cmp_eq_u32 vcc, 19, v17")
    a(f"v_cndmask_b32 v17, v17, 20, vcc")
    a(f"v_lshlrev_b32 v{L1A}, 2, v17")
    a(f"v_add_u32 v{L1A}, {L_KV + 1280}, v{L1A}")
    a(f"v_mul_u32_u24 v{PQA}, 36, v{S}")
    a(f"v_lshl_add_u32 v{PQA}, v{Q}, 3, v{PQA}")
    a(f"v_add_u32 v{PQA}, {L_PQ}, v{PQA}")
    a(f"s_mov_b32 s33, {EPS_1EM6:#x}")
    for hh in range(NH):
        b = RAWB + 20 * hh
        a(f"s_mul_i32 s32, s3, {NH}")
        a(f"s_add_u32 s32, s32, {hh}")
        a(f"s_min_u32 s32, s32, 31")
        a(f"s_mul_i32 s34, s32, {KV_HEAD}")
        a(f"s_mul_i32 s35, s32, 1152")
        a(f"v_add_u32 v16, s34, v{A0A}"); a(f"ds_read_b128 v[{b}:{b+3}], v16")
        a(f"v_add_u32 v17, s34, v{A1A}"); a(f"ds_read_b128 v[{b+4}:{b+7}], v17")
        a(f"v_add_u32 v18, s34, v{L0A}"); a(f"ds_read2_b32 v[{b+8}:{b+9}], v18 offset0:0 offset1:32")
        a(f"v_add_u32 v19, s34, v{L1A}"); a(f"ds_read2_b32 v[{b+10}:{b+11}], v19 offset0:0 offset1:32")
        a(f"v_add_u32 v16, s35, v{PQA}")
        a(f"ds_read2_b32 v[{b+12}:{b+13}], v16 offset0:0 offset1:1")
        a(f"ds_read_b32 v{b+14}, v16 offset:8")
        a(f"ds_read2_b32 v[{b+16}:{b+17}], v16 offset0:144 offset1:145")
        a(f"ds_read_b32 v{b+18}, v16 offset:{576+8}")
    D = 80
    AM, AL, RC, PK = 16, 17, 18, 2
    for hh in range(NH):
        b = RAWB + 20 * hh
        a(f"s_waitcnt lgkmcnt({min(15, 8*(NH-1-hh))})")
        a(f"v_cvt_pk_bf16_f32 v{b}, v{b}, v{b+1}"); a(f"v_cvt_pk_bf16_f32 v{b+1}, v{b+2}, v{b+3}")
        a(f"v_cvt_pk_bf16_f32 v{b+4}, v{b+4}, v{b+5}"); a(f"v_cvt_pk_bf16_f32 v{b+5}, v{b+6}, v{b+7}")
        a(f"v_cvt_pk_bf16_f32 v{b+8}, v{b+8}, v{b+9}"); a(f"v_mov_b32 v{b+9}, 0")
        a(f"v_cvt_pk_bf16_f32 v{b+10}, v{b+10}, v{b+11}"); a(f"v_mov_b32 v{b+11}, 0")
        for rt in range(2):
            p = b + 12 + 4 * rt
            a(f"v_and_b32 v{p+2}, v{MQ3}, v{p+2}")
            a(f"v_mov_b32 v{p+3}, 0")
        for rt in range(2):
            p = b + 12 + 4 * rt
            a(mfma16(D + 8 * rt, b, p, "0")); a(mfma16(D + 8 * rt + 4, b + 4, p, "0"))
        for rt in range(2):
            p = b + 12 + 4 * rt
            a(mfma16(D + 8 * rt, b + 8, p + 2)); a(mfma16(D + 8 * rt + 4, b + 10, p + 2))
        a(f"s_mul_i32 s32, s3, {NH}")
        a(f"s_add_u32 s32, s32, {hh}")
        a(f"s_min_u32 s32, s32, 31")
        a(f"s_and_b32 s34, s32, 1")
        a(f"s_mul_i32 s35, s32, 36")
        a(f"s_lshl_b32 s36, s34, 2")
        a(f"s_add_u32 s36, s36, s35")
        a(f"s_xor_b32 s37, s34, 1")
        a(f"s_lshl_b32 s37, s37, 5")
        a(f"s_add_u32 s37, s37, s35")
        a(f"v_lshl_add_u32 v{AM}, v{Q}, 3, s36")
        a(f"v_lshrrev_b32 v{AL}, 4, v{AM}")
        a(f"v_xor_b32 v{AL}, v{AL}, v{S7}")
        a(f"v_and_b32 v{AM}, 15, v{AM}")
        a(f"v_lshl_add_u32 v{AM}, v{AL}, 4, v{AM}")
        a(f"v_add_u32 v{AM}, v{AM}, v{S1152}")
        a(f"s_lshr_b32 s38, s37, 4")
        a(f"s_and_b32 s37, s37, 15")
        a(f"v_xor_b32 v{AL}, s38, v{S7}")
        a(f"v_lshlrev_b32 v{AL}, 4, v{AL}")
        a(f"v_add3_u32 v{AL}, v{AL}, v{S1152}, s37")
        for rt in range(2):
            a(f"v_add_f32 v{b+2+rt}, s33, v{D+8*rt+4+2}")
        for rt in range(2):
            a(f"v_rcp_f32 v{b+2+rt}, v{b+2+rt}")
        for rt in range(2):
            d0, d1, rc = D + 8 * rt, D + 8 * rt + 4, b + 2 + rt
            for i in range(4): a(f"v_mul_f32 v{d0+i}, v{d0+i}, v{rc}")
            a(f"v_mul_f32 v{d1}, v{d1}, v{rc}"); a(f"v_mul_f32 v{d1+1}, v{d1+1}, v{rc}")
        for rt in range(2):
            d0, d1 = D + 8 * rt, D + 8 * rt + 4
            pk = b + 12 + 4 * rt
            a(f"v_cvt_pk_bf16_f32 v{pk}, v{d0}, v{d0+1}")
            a(f"v_cvt_pk_bf16_f32 v{pk+1}, v{d0+2}, v{d0+3}")
            a(f"v_cvt_pk_bf16_f32 v{pk+2}, v{d1}, v{d1+1}")
            a(f"ds_write_b64 v{AM}, v[{pk}:{pk+1}] offset:{18432*rt}")
        a(f"s_mov_b64 exec, s[{M_Q0}:{M_Q0+1}]")
        for rt in range(2):
            a(f"ds_write_b32 v{AL}, v{b+12+4*rt+2} offset:{18432*rt}")
        a("s_mov_b64 exec, -1")

def xres_loads(a, srd, base_s, dst):
    t = V_T0
    a(f"v_and_b32 v{t}, 15, v1")
    a(f"v_lshrrev_b32 v{t+1}, 4, v1")
    a(f"v_mul_u32_u24 v{t}, 1152, v{t}")
    a(f"v_lshl_add_u32 v{t}, v{t+1}, 3, v{t}")
    a(f"s_mul_i32 s31, s{S_RB32}, {32*1152}")
    a(f"s_mul_i32 s32, s{S_S4}, 288")
    a("s_add_u32 s31, s31, s32")
    a("s_lshl_b32 s32, s3, 5")
    a("s_add_u32 s31, s31, s32")
    a(f"buffer_load_dwordx2 v[{dst}:{dst+1}], v{t}, {srd}, s31 offen")
    a(f"s_add_u32 s31, s31, 18432")
    a(f"buffer_load_dwordx2 v[{dst+2}:{dst+3}], v{t}, {srd}, s31 offen")

def p2_epilogue(a):
    a(f"s_mov_b32 s52, {ONES_BF16:#x}")
    t = V_T0
    for rt in range(2):
        x0, x1 = XR + 2 * rt, XR + 2 * rt + 1
        ac = AC + 4 * rt
        a(f"v_lshlrev_b32 v{t}, 16, v{x0}"); a(f"v_and_b32 v{t+1}, 0xffff0000, v{x0}")
        a(f"v_lshlrev_b32 v{t+2}, 16, v{x1}"); a(f"v_and_b32 v{t+3}, 0xffff0000, v{x1}")
        for i in range(4): a(f"v_add_f32 v{ac+i}, v{ac+i}, v{t+i}")
        a(f"v_cvt_pk_bf16_f32 v{x0}, v{ac}, v{ac+1}")
        a(f"v_cvt_pk_bf16_f32 v{x1}, v{ac+2}, v{ac+3}")
        a(f"ds_write_b64 v{V_EP}, v[{x0}:{x1}] offset:{L_HS + 16*288*rt}")
    stats_accum(a, [(XR, XR + 1), (XR + 2, XR + 3)], AF)

def row_stats_wave(a, stat_buf, double_ln):
    a("s_mov_b32 exec_lo, -1"); a("s_mov_b32 exec_hi, 0")
    a(f"v_lshlrev_b32 v12, 3, v1")
    a(f"s_lshl_b32 s31, s{S_RB32}, 10")
    a(f"s_add_u32 s31, s31, {stat_buf:#x}")
    b = 20
    for s4 in range(4):
        a(f"buffer_load_dwordx2 v[{b+2*s4}:{b+2*s4+1}], v12, {WSR}, s31 offen offset:{256*s4} sc1")
    a("s_waitcnt vmcnt(0)")
    inv = f2u(1.0 / 576)
    a(f"v_pk_add_f32 v[{b}:{b+1}], v[{b}:{b+1}], v[{b+2}:{b+3}]")
    a(f"v_pk_add_f32 v[{b+4}:{b+5}], v[{b+4}:{b+5}], v[{b+6}:{b+7}]")
    a(f"v_pk_add_f32 v[{b}:{b+1}], v[{b}:{b+1}], v[{b+4}:{b+5}]")
    m_, sc, r1 = b + 8, b + 9, b + 10
    a(f"v_mul_f32 v{m_}, {inv:#x}, v{b}")
    a(f"v_mul_f32 v{b+1}, {inv:#x}, v{b+1}")
    a(f"v_fma_f32 v{b+1}, -v{m_}, v{m_}, v{b+1}")
    a(f"v_max_f32 v{b+1}, 0, v{b+1}")
    a(f"v_add_f32 v{b+2}, {EPS_1EM5:#x}, v{b+1}")
    a(f"v_rsq_f32 v{r1}, v{b+2}")
    if double_ln:
        a(f"v_mul_f32 v{b+2}, v{r1}, v{r1}")
        a(f"v_mul_f32 v{b+2}, v{b+2}, v{b+1}")
        a(f"v_add_f32 v{b+2}, {EPS_1EM5:#x}, v{b+2}")
        a(f"v_rsq_f32 v{b+2}, v{b+2}")
        a(f"v_mul_f32 v{sc}, v{r1}, v{b+2}")
    else:
        a(f"v_mov_b32 v{sc}, v{r1}")
    a(f"v_mov_b32 v{b+11}, 0")
    a(f"v_lshlrev_b32 v12, 4, v1")
    a(f"v_add_u32 v12, {L_RST}, v12")
    a(f"ds_write_b128 v12, v[{b+8}:{b+11}]")
    a("s_mov_b64 exec, -1")

def c1_wave(a):
    a("s_mov_b32 exec_lo, -1"); a("s_mov_b32 exec_hi, 0xf")
    a(f"s_mul_i32 s31, s{S_S4}, 576")
    a(f"s_add_u32 s31, s31, {C1P:#x}")
    a(f"buffer_load_dwordx4 v[20:23], v{V_L16}, {WSR}, s31 offen sc1")
    a(f"buffer_load_dwordx4 v[24:27], v{V_L16}, {WSR}, s31 offen offset:2304 sc1")
    a(f"s_add_u32 s31, s31, 4608")
    a(f"buffer_load_dwordx4 v[28:31], v{V_L16}, {WSR}, s31 offen sc1")
    a("s_waitcnt vmcnt(0)")
    for i in (0, 2):
        a(f"v_pk_add_f32 v[{20+i}:{21+i}], v[{20+i}:{21+i}], v[{24+i}:{25+i}]")
        a(f"v_pk_add_f32 v[{20+i}:{21+i}], v[{20+i}:{21+i}], v[{28+i}:{29+i}]")
    a(f"v_add_u32 v12, {L_C1}, v{V_L16}")
    a(f"ds_write_b128 v12, v[20:23]")
    a("s_mov_b64 exec, -1")

def read_row_stats(a):
    a(f"v_and_b32 v12, 15, v1")
    a(f"v_lshlrev_b32 v12, 4, v12")
    for rt in range(2):
        a(f"ds_read_b128 v[{MS+4*rt}:{MS+4*rt+3}], v12 offset:{L_RST + 256*rt}")

def gelu_pairs(a, regs, tmp):
    n = len(regs)
    for r in regs: assert r % 2 == 0
    for u, r in enumerate(regs):
        a(f"v_pk_mul_f32 v[{tmp+2*u}:{tmp+2*u+1}], v[{r}:{r+1}], v[{r}:{r+1}]")
    for u, r in enumerate(regs):
        a(f"v_pk_fma_f32 v[{tmp+2*u}:{tmp+2*u+1}], v[{tmp+2*u}:{tmp+2*u+1}], s[54:55], v[{GA}:{GA+1}]")
    for u, r in enumerate(regs):
        a(f"v_pk_mul_f32 v[{tmp+2*u}:{tmp+2*u+1}], v[{tmp+2*u}:{tmp+2*u+1}], v[{r}:{r+1}]")
    for u in range(2 * n): a(f"v_exp_f32 v{tmp+u}, v{tmp+u}")
    for u, r in enumerate(regs):
        a(f"v_pk_add_f32 v[{tmp+2*u}:{tmp+2*u+1}], v[{tmp+2*u}:{tmp+2*u+1}], s[58:59]")
    for u in range(2 * n): a(f"v_rcp_f32 v{tmp+u}, v{tmp+u}")
    for u, r in enumerate(regs):
        a(f"v_pk_mul_f32 v[{r}:{r+1}], v[{r}:{r+1}], v[{tmp+2*u}:{tmp+2*u+1}]")

GA = 18
GELU_A = -2.0 * 0.7978845608028654 * 1.4426950408889634
GELU_B = GELU_A * 0.044715
def gelu_consts(a):
    a(f"s_mov_b32 s54, {f2u(GELU_B):#x}"); a(f"s_mov_b32 s55, {f2u(GELU_B):#x}")
    a(f"s_mov_b32 s58, 1.0"); a(f"s_mov_b32 s59, 1.0")
    a(f"v_mov_b32 v{GA}, {f2u(GELU_A):#x}"); a(f"v_mov_b32 v{GA+1}, {f2u(GELU_A):#x}")

def p2b_epilogue(a):
    C1 = MS + 8
    t = V_T0
    read_row_stats(a)
    a(f"v_lshrrev_b32 v12, 4, v1")
    a(f"v_lshlrev_b32 v12, 4, v12")
    a(f"s_lshl_b32 s31, s3, 6")
    a(f"v_add_u32 v12, s31, v12")
    a(f"ds_read_b128 v[{C1}:{C1+3}], v12 offset:{L_C1}")
    gelu_consts(a)
    a("s_waitcnt lgkmcnt(0)")
    for rt in range(2):
        ac = AC + 4 * rt; m, sc = MS + 4 * rt, MS + 4 * rt + 1
        for i in range(4):
            a(f"v_fma_f32 v{ac+i}, -v{m}, v{C1+i}, v{ac+i}")
        for i in range(4):
            a(f"v_mul_f32 v{ac+i}, v{ac+i}, v{sc}")
    gelu_pairs(a, [AC, AC + 2, AC + 4, AC + 6], AF)
    for rt in range(2):
        ac = AC + 4 * rt
        a(f"v_cvt_pk_bf16_f32 v{XR+2*rt}, v{ac}, v{ac+1}")
        a(f"v_cvt_pk_bf16_f32 v{XR+2*rt+1}, v{ac+2}, v{ac+3}")
        a(f"ds_write_b64 v{V_EP}, v[{XR+2*rt}:{XR+2*rt+1}] offset:{L_STG + 16*288*rt}")

def p3_epilogue(a):
    a(f"s_mov_b32 s52, {ONES_BF16:#x}")
    t = V_T0
    for rt in range(2):
        a(f"ds_read_b64 v[{XR+2*rt}:{XR+2*rt+1}], v{V_EP} offset:{L_HS + 16*288*rt}")
    read_row_stats(a)
    a("s_waitcnt lgkmcnt(0)")
    for rt in range(2):
        x0, x1 = XR + 2 * rt, XR + 2 * rt + 1
        ac = AC + 4 * rt; m, r1 = MS + 4 * rt, MS + 4 * rt + 2
        a(f"v_lshlrev_b32 v{t}, 16, v{x0}"); a(f"v_and_b32 v{t+1}, 0xffff0000, v{x0}")
        a(f"v_lshlrev_b32 v{t+2}, 16, v{x1}"); a(f"v_and_b32 v{t+3}, 0xffff0000, v{x1}")
        for i in range(4): a(f"v_sub_f32 v{t+i}, v{t+i}, v{m}")
        for i in range(4): a(f"v_fma_f32 v{ac+i}, v{t+i}, v{r1}, v{ac+i}")
        a(f"v_cvt_pk_bf16_f32 v{x0}, v{ac}, v{ac+1}")
        a(f"v_cvt_pk_bf16_f32 v{x1}, v{ac+2}, v{ac+3}")
        a(f"ds_write_b64 v{V_EP}, v[{x0}:{x1}] offset:{L_STG + 16*288*rt}")
    stats_accum(a, [(XR, XR + 1), (XR + 2, XR + 3)], AF)

def p3_tile_dma(a):
    t = V_T0
    a(f"s_lshl_b32 s31, s3, 6")
    a(f"v_add_u32 v{t}, s31, v1")
    a(f"v_mul_u32_u24 v{t+1}, 911, v{t}")
    a(f"v_lshrrev_b32 v{t+1}, 16, v{t+1}")
    a(f"v_mul_u32_u24 v{t+2}, 72, v{t+1}")
    a(f"v_sub_u32 v{t+2}, v{t}, v{t+2}")
    a(f"v_xor_b32 v{t+2}, v{t+2}, v{t+1}")
    a(f"v_mul_u32_u24 v{t+3}, 57, v{t+2}")
    a(f"v_lshrrev_b32 v{t+3}, 10, v{t+3}")
    a(f"v_lshrrev_b32 v{t+4}, 1, v{t+3}")
    a(f"v_add_u32 v{t+4}, 1, v{t+4}")
    a(f"v_and_b32 v{t+5}, 1, v{t+3}")
    a(f"v_cmp_eq_u32 vcc, 1, v{t+5}")
    a(f"v_sub_u32 v{t+5}, 0, v{t+4}")
    a(f"v_cndmask_b32 v{t+4}, v{t+5}, v{t+4}, vcc")
    a(f"v_add_u32 v{t+1}, v{t+1}, v{t+4}")
    a(f"s_lshl_b32 s32, s{S_RB32}, 5")
    a(f"v_add_u32 v{t+1}, s32, v{t+1}")
    a(f"v_add_u32 v{t+4}, 2, v{t+4}")
    a(f"v_mul_u32_u24 v{t+4}, 288, v{t+4}")
    a(f"v_add_u32 v{t+4}, v{V_TD}, v{t+4}")
    a(f"s_mul_i32 s33, s{S_RB32}, 9216")
    a(f"s_add_u32 s33, s33, {HH - 576:#x}")
    a(f"s_lshl_b32 s31, s3, 10")
    a(f"v_mov_b32 v{t+6}, 0x7fffffff")
    for g in range(4):
        a(f"v_cmp_gt_u32 vcc, 2048, v{t+1}")
        a(f"v_cndmask_b32 v{t+5}, v{t+6}, v{t+4}, vcc")
        a(f"s_mov_b32 m0, s31")
        a(f"s_add_u32 s31, s31, 9216")
        a(f"buffer_load_dwordx4 v{t+5}, {WSR}, s33 offen sc1 lds")
        a(f"s_add_u32 s33, s33, 2304")
        a(f"v_add_u32 v{t+1}, 8, v{t+1}")
```

```python
from common import *
from gemm import *
import p1, mid
from p1 import frag_addrs, tile_dma_voff, tile_dma, V_T0, V_L16, V_XE, V_XO
from mid import gelu_consts, gelu_pairs, GA

S_J8 = 61; S_RB = 62
S_SO = 45; S_CNT = 47
L_X1 = LDS_A0; L_G = LDS_A1
L_RS = LDS_MISC
V_TD = 4
XF = 20
ACC = 52
WR = 100
DEPTH = 4
C3 = 148
RS = 160

def mlp_mapping(a):
    a(f"s_and_b32 s{S_J8}, s{S_XCD}, 3")
    a(f"s_lshl_b32 s{S_J8}, s{S_J8}, 1")
    a(f"s_and_b32 s31, s{S_LOC}, 1")
    a(f"s_add_u32 s{S_J8}, s{S_J8}, s31")
    a(f"s_lshr_b32 s{S_RB}, s{S_XCD}, 2")
    a(f"s_lshl_b32 s{S_RB}, s{S_RB}, 4")
    a(f"s_lshr_b32 s31, s{S_LOC}, 1")
    a(f"s_add_u32 s{S_RB}, s{S_RB}, s31")

def mlp_prologue(a):
    mlp_mapping(a)
    a(f"v_lshlrev_b32 v{V_L16}, 4, v1")
    a(f"s_mul_i32 s{S_SO}, s{S_J8}, 12")
    a(f"s_add_u32 s{S_SO}, s{S_SO}, s3")
    a(f"s_mul_i32 s{S_SO}, s{S_SO}, 55296")
    a(f"s_add_u32 s{S_SO}, s{S_SO}, {W3P:#x}")
    tile_dma_voff(a, V_TD, "s4")
    frag_addrs(a, V_XE, V_XO, L_X1)

L_C3 = LDS_MISC + 1024
def c3_wave(a):
    a(f"s_mul_i32 s31, s{S_J8}, 2304")
    a(f"s_add_u32 s31, s31, {C3P:#x}")
    for k in range(3):
        for p in range(3):
            if p == 2: a(f"s_mov_b64 exec, 0xffff")
            r = ACC + 12 * k + 4 * p
            a(f"buffer_load_dwordx4 v[{r}:{r+3}], v{V_L16}, {WSR}, s31 offen offset:{1024*p} sc1")
        a("s_mov_b64 exec, -1")
        if k < 2: a("s_add_u32 s31, s31, 18432")
def c3_wave_finish(a):
    for i in range(0, 12, 2):
        a(f"v_pk_add_f32 v[{ACC+i}:{ACC+i+1}], v[{ACC+i}:{ACC+i+1}], v[{ACC+12+i}:{ACC+13+i}]")
        a(f"v_pk_add_f32 v[{ACC+i}:{ACC+i+1}], v[{ACC+i}:{ACC+i+1}], v[{ACC+24+i}:{ACC+25+i}]")
    a(f"v_add_u32 v12, {L_C3}, v{V_L16}")
    a(f"ds_write_b128 v12, v[{ACC}:{ACC+3}]")
    a(f"ds_write_b128 v12, v[{ACC+4}:{ACC+7}] offset:1024")
    a(f"s_mov_b64 exec, 0xffff")
    a(f"ds_write_b128 v12, v[{ACC+8}:{ACC+11}] offset:2048")
    a("s_mov_b64 exec, -1")

def row_stats(a):
    a(f"v_lshrrev_b32 v12, 5, v1")
    a(f"v_lshlrev_b32 v12, 10, v12")
    a(f"v_and_b32 v13, 31, v1")
    a(f"v_lshl_add_u32 v12, v13, 3, v12")
    a(f"s_lshl_b32 s31, s{S_RB}, 11")
    a(f"s_add_u32 s31, s31, {X1STAT:#x}")
    for s4 in range(4):
        a(f"buffer_load_dwordx2 v[{ACC+36+2*s4}:{ACC+37+2*s4}], v12, {WSR}, s31 offen offset:{256*s4} sc1")
def row_stats_finish(a):
    b = ACC + 36
    inv = f2u(1.0 / 576)
    a(f"v_add_f32 v{b}, v{b}, v{b+2}"); a(f"v_add_f32 v{b+1}, v{b+1}, v{b+3}")
    a(f"v_add_f32 v{b+4}, v{b+4}, v{b+6}"); a(f"v_add_f32 v{b+5}, v{b+5}, v{b+7}")
    a(f"v_add_f32 v{b}, v{b}, v{b+4}"); a(f"v_add_f32 v{b+1}, v{b+1}, v{b+5}")
    a(f"v_mul_f32 v{b}, {inv:#x}, v{b}")
    a(f"v_mul_f32 v{b+1}, {inv:#x}, v{b+1}")
    a(f"v_fma_f32 v{b+1}, -v{b}, v{b}, v{b+1}")
    a(f"v_max_f32 v{b+1}, 0, v{b+1}")
    a(f"v_add_f32 v{b+1}, {EPS_1EM5:#x}, v{b+1}")
    a(f"v_rsq_f32 v{b+2}, v{b+1}")
    a(f"v_mul_f32 v{b+3}, v{b}, v{b+2}")
    a(f"v_lshlrev_b32 v12, 3, v1")
    a(f"v_add_u32 v12, {L_RS}, v12")
    a(f"ds_write_b64 v12, v[{b+2}:{b+3}]")

def gemm1_epilogue(a):
    t = V_T0
    a(f"v_and_b32 v{t}, 15, v1")
    a(f"v_lshlrev_b32 v{t+1}, 3, v{t}")
    a(f"v_add_u32 v{t+1}, {L_RS}, v{t+1}")
    for rt in range(4):
        a(f"ds_read_b64 v[{RS+2*rt}:{RS+2*rt+1}], v{t+1} offset:{128*rt}")
    a(f"v_lshrrev_b32 v{t+2}, 4, v1")
    a(f"v_lshlrev_b32 v{t+2}, 4, v{t+2}")
    a(f"s_mul_i32 s31, s3, 192")
    a(f"s_add_u32 s31, s31, {L_C3}")
    a(f"v_add_u32 v{t+2}, s31, v{t+2}")
    for tt in range(3):
        a(f"ds_read_b128 v[{C3+4*tt}:{C3+4*tt+3}], v{t+2} offset:{64*tt}")
    gelu_consts(a)
    a(f"v_lshrrev_b32 v{t+1}, 4, v1")
    a(f"v_lshrrev_b32 v{t+2}, 1, v{t+1}")
    a(f"s_mul_i32 s31, s3, 6")
    a(f"v_add_u32 v{t+2}, s31, v{t+2}")
    a(f"v_and_b32 v{t+3}, 7, v{t}")
    a(f"v_mul_u32_u24 v{t+4}, 1152, v{t}")
    a(f"v_and_b32 v{t+1}, 1, v{t+1}")
    a(f"v_lshl_add_u32 v{t+4}, v{t+1}, 3, v{t+4}")
    a(f"v_add_u32 v{t+4}, {L_G}, v{t+4}")
    for tt in range(3):
        a(f"v_add_u32 v{t+1}, {2*tt}, v{t+2}")
        a(f"v_xor_b32 v{t+1}, v{t+1}, v{t+3}")
        a(f"v_lshl_add_u32 v{XF+28+tt}, v{t+1}, 4, v{t+4}")
    a("s_waitcnt lgkmcnt(0)")
    for rt in range(4):
        rs, mr = RS + 2 * rt, RS + 2 * rt + 1
        for tt in range(3):
            ac = ACC + 16 * tt + 4 * rt
            for i in range(4):
                a(f"v_mul_f32 v{XF+i}, v{mr}, v{C3+4*tt+i}")
            for i in range(4):
                a(f"v_fma_f32 v{ac+i}, v{ac+i}, v{rs}, -v{XF+i}")
        regs = []
        for tt in range(3):
            ac = ACC + 16 * tt + 4 * rt
            regs += [ac, ac + 2]
        gelu_pairs(a, regs, XF + 4)
        for tt in range(3):
            ac = ACC + 16 * tt + 4 * rt
            a(f"v_cvt_pk_bf16_f32 v{XF+16+2*tt}, v{ac}, v{ac+1}")
            a(f"v_cvt_pk_bf16_f32 v{XF+17+2*tt}, v{ac+2}, v{ac+3}")
            a(f"ds_write_b64 v{XF+28+tt}, v[{XF+16+2*tt}:{XF+17+2*tt}] offset:{18432*rt}")

def gemm2_epilogue(a):
    t = V_T0
    a(f"v_and_b32 v{t}, 15, v1")
    a(f"v_lshrrev_b32 v{t+1}, 4, v1")
    a(f"v_lshrrev_b32 v{t+2}, 1, v{t+1}")
    a(f"s_mul_i32 s31, s3, 6")
    a(f"v_add_u32 v{t+2}, s31, v{t+2}")
    a(f"v_and_b32 v{t+3}, 7, v{t}")
    a(f"v_mul_u32_u24 v{t+4}, 1152, v{t}")
    a(f"v_and_b32 v{t+1}, 1, v{t+1}")
    a(f"v_lshl_add_u32 v{t+4}, v{t+1}, 3, v{t+4}")
    if L_X1: a(f"v_add_u32 v{t+4}, {L_X1}, v{t+4}")
    for tt in range(3):
        a(f"v_add_u32 v{t+1}, {2*tt}, v{t+2}")
        a(f"v_xor_b32 v{t+1}, v{t+1}, v{t+3}")
        a(f"v_lshl_add_u32 v{XF+28+tt}, v{t+1}, 4, v{t+4}")
    for rt in range(4):
        for tt in range(3):
            ac = ACC + 16 * tt + 4 * rt
            d = XF + 2 * ((3 * rt + tt) % 8)
            a(f"v_cvt_pk_bf16_f32 v{d}, v{ac}, v{ac+1}")
            a(f"v_cvt_pk_bf16_f32 v{d+1}, v{ac+2}, v{ac+3}")
            a(f"ds_write_b64 v{XF+28+tt}, v[{d}:{d+1}] offset:{18432*rt}")

def part_store(a):
    a(f"v_lshlrev_b32 v12, 4, v0")
    for i in range(6):
        a(f"ds_read_b128 v[{XF+4*i}:{XF+4*i+3}], v12 offset:{L_X1 + 12288*i}")
    for i in range(6):
        g = ACC + i
        a(f"v_add_u32 v13, {768*i}, v0")
        a(f"v_mul_u32_u24 v14, 58255, v13")
        a(f"v_lshrrev_b32 v14, 22, v14")
        a(f"v_mul_u32_u24 v15, 72, v14")
        a(f"v_sub_u32 v15, v13, v15")
        a(f"v_and_b32 v16, 7, v14")
        a(f"v_xor_b32 v15, v15, v16")
        a(f"v_mul_u32_u24 v14, 1152, v14")
        a(f"v_lshl_add_u32 v{g}, v15, 4, v14")
    a(f"s_mul_i32 s31, s{S_J8}, {2048*1152}")
    a(f"s_mul_i32 s32, s{S_RB}, 73728")
    a("s_add_u32 s31, s31, s32")
    a(f"s_add_u32 s31, s31, {PART:#x}")
    for i in range(6):
        a(f"s_waitcnt lgkmcnt({5-i})")
        a(f"buffer_store_dwordx4 v[{XF+4*i}:{XF+4*i+3}], v{ACC+i}, {WSR}, s31 offen sc1")

def final_reduce(a):
    OUT = f"s[{SRD_OUT}:{SRD_OUT+3}]"
    Ld = a.newlabel("Lfrd")
    a("s_cmp_ge_u32 s3, 9"); a(f"s_cbranch_scc1 {Ld}")
    a(f"v_mul_u32_u24 v12, 911, v0")
    a(f"v_lshrrev_b32 v12, 16, v12")
    a(f"v_mul_u32_u24 v13, 72, v12")
    a(f"v_sub_u32 v13, v0, v13")
    a(f"v_lshlrev_b32 v14, 4, v0")
    a(f"v_mul_u32_u24 v15, 57, v13")
    a(f"v_lshrrev_b32 v15, 10, v15")
    a(f"v_mul_u32_u24 v16, 18, v15")
    a(f"v_sub_u32 v16, v13, v16")
    a(f"v_mul_u32_u24 v12, 288, v12")
    a(f"v_lshl_add_u32 v12, v16, 4, v12")
    a(f"s_mov_b32 s31, 589824")
    a(f"v_mul_lo_u32 v15, v15, s31")
    a(f"v_add_u32 v15, v15, v12")
    a(f"s_lshl_b32 s32, s{S_RB}, 6")
    a(f"s_lshl_b32 s33, s{S_J8}, 3")
    a("s_add_u32 s32, s32, s33")
    a("s_mul_i32 s33, s32, 1152")
    a("s_mul_i32 s34, s32, 288")
    a(f"s_add_u32 s35, s33, {PART:#x}")
    for j in range(8):
        a(f"buffer_load_dwordx4 v[{XF+4*j}:{XF+4*j+3}], v14, {WSR}, s35 offen sc1")
        if j < 7: a(f"s_add_u32 s35, s35, {2048*1152}")
    a(f"s_add_u32 s35, s34, {HB:#x}")
    a(f"buffer_load_dwordx4 v[{ACC}:{ACC+3}], v15, {WSR}, s35 offen sc1")
    a(f"s_add_u32 s35, s34, {X1:#x}")
    a(f"buffer_load_dwordx4 v[{ACC+4}:{ACC+7}], v15, {WSR}, s35 offen sc1")
    S = ACC + 8
    a("s_waitcnt vmcnt(2)")
    for i in range(4):
        a(f"v_lshlrev_b32 v{S+2*i}, 16, v{XF+i}")
        a(f"v_and_b32 v{S+2*i+1}, 0xffff0000, v{XF+i}")
    for j in range(1, 8):
        for i in range(4):
            r = XF + 4 * j + i
            a(f"v_lshlrev_b32 v{S+8}, 16, v{r}")
            a(f"v_and_b32 v{S+9}, 0xffff0000, v{r}")
            a(f"v_pk_add_f32 v[{S+2*i}:{S+2*i+1}], v[{S+2*i}:{S+2*i+1}], v[{S+8}:{S+9}]")
    a("s_waitcnt vmcnt(0)")
    for b in (ACC + 4, ACC):
        for i in range(4):
            a(f"v_lshlrev_b32 v{S+8}, 16, v{b+i}")
            a(f"v_and_b32 v{S+9}, 0xffff0000, v{b+i}")
            a(f"v_pk_add_f32 v[{S+2*i}:{S+2*i+1}], v[{S+2*i}:{S+2*i+1}], v[{S+8}:{S+9}]")
    for i in range(4):
        a(f"v_cvt_pk_bf16_f32 v{XF+i}, v{S+2*i}, v{S+2*i+1}")
    a(f"buffer_store_dwordx4 v[{XF}:{XF+3}], v14, {OUT}, s33 offen")
    a.label(Ld)

def pk_wait(a, base=F_PKD):
    a(f"s_and_b32 s31, s{S_XCD}, 3")
    a(f"s_lshl_b32 s31, s31, 8")
    a(f"s_add_u32 s31, s31, {base:#x}")
    a(f"v_lshlrev_b32 v12, 7, v1")
    a(f"v_add_u32 v12, s31, v12")
    poll_flags(a, 12, 13, 3)

def l2_warm(a, base, vd):
    a(f"s_and_b32 s31, s{S_XCD}, 3")
    a(f"s_mul_i32 s31, s31, {2*663552}")
    a(f"s_mul_i32 s32, s{S_LOC}, {324*128}")
    a("s_add_u32 s31, s31, s32")
    a(f"v_lshlrev_b32 v12, 7, v1")
    a(f"s_add_u32 s33, s31, {base:#x}")
    for k in range(6):
        if k == 5: a("s_mov_b64 exec, 0xf")
        a(f"buffer_load_dword v{vd+k}, v12, {WSR}, s33 offen sc1")
        a("s_add_u32 s33, s33, 8192")
    a("s_mov_b64 exec, -1")
```

```python
import sys
sys.path.insert(0, "gen")
from common import *
import common, p1, helpers, mid, mlp
from common import stamp, stamp_dump
from gemm import *

def br_wave(a, cond, val, target, taken_if=True):
    a(f"s_cmp_{cond}_u32 s3, {val}")
    a(f"s_cbranch_scc{1 if taken_if else 0} {target}")

def phase_p01(a, K):
    br_wave(a, "ge", 8, "L_p0_help")
    p1.p0_ln(a)
    a("s_barrier")
    a("s_waitcnt vmcnt(0) lgkmcnt(0)")
    p1.finish_epoch(a)
    stamp(a, 3)
    a("s_barrier")
    br_wave(a, "eq", 0, "L_p0_nf", False)
    a("s_lshl_b32 s31, s2, 7")
    set_flag(a, F_P0D, 31)
    p1.p1_wait_p0(a)
    a.label("L_p0_nf")
    a("s_barrier")
    br_wave(a, "ge", 4, "L_p1_q")
    p1.p1_kv(a)
    stamp(a, 6)
    a("s_branch L_p1_end")
    a.label("L_p1_q")
    p1.p1_q(a)
    a("s_setprio 0")
    stamp(a, 6)
    a("s_branch L_p1_end")
    a.label("L_p0_help")
    a(f"v_lshlrev_b32 v12, 2, v1")
    a(f"v_add_u32 v12, {p1.LFLAG}, v12")
    a("v_mov_b32 v13, 0")
    a("s_mov_b64 exec, 0xf")
    a("ds_write_b32 v12, v13")
    a("s_mov_b64 exec, -1")
    a("s_mov_b32 s73, 0")
    a("s_cmp_ge_u32 s2, 144")
    a("s_cbranch_scc1 L_p0_small")
    helpers.p0_issue(a)
    a("s_waitcnt lgkmcnt(0)")
    p1.finish_epoch(a)
    a("s_barrier")
    helpers.p0_finish(a)
    a("s_barrier")
    a("s_branch L_p0_j")
    a.label("L_p0_small")
    a("s_waitcnt lgkmcnt(0)")
    p1.finish_epoch(a)
    br_wave(a, "eq", 8, "L_p0_n8", False)
    helpers.code_prefetch(a, K, "L_code_end")
    helpers.zero_kv(a)
    a.label("L_p0_n8")
    br_wave(a, "eq", 11, "L_p0_n11", False)
    helpers.job_setup_small(a, LDS_A1 + 40960)
    a(f"s_mov_b32 s73, s{helpers.S_ACT}")
    a.label("L_p0_n11")
    a("s_barrier")
    a("s_cmp_eq_u32 s73, 0"); a("s_cbranch_scc1 L_p0_nl")
    helpers.job_loads(a)
    a.label("L_p0_nl")
    a("s_barrier")
    a("s_cmp_eq_u32 s73, 0"); a("s_cbranch_scc1 L_p0_j")
    helpers.job_run(a)
    a("s_mov_b32 s73, 2")
    a("s_branch L_p0_jx")
    a.label("L_p0_j")
    br_wave(a, "eq", 9, "L_p0_j3")
    br_wave(a, "eq", 10, "L_p0_j4")
    a("s_branch L_p0_jx")
    a.label("L_p0_j3")
    helpers.job_setup_big(a, 3, LDS_A1 + 45568)
    a("s_branch L_p0_jl")
    a.label("L_p0_j4")
    helpers.job_setup_big(a, 4, LDS_A1 + 50176)
    a.label("L_p0_jl")
    a(f"s_mov_b32 s73, s{helpers.S_ACT}")
    a("s_cmp_eq_u32 s73, 0"); a("s_cbranch_scc1 L_p0_jx")
    helpers.job_loads(a)
    a.label("L_p0_jx")
    a("s_barrier")
    br_wave(a, "eq", 8, "L_p1_h8", False)
    p1.p1_mapping(a)
    p1.p1_xn_dma(a)
    a.label("L_p1_h8")
    a("s_barrier")
    br_wave(a, "eq", 8, "L_p1_h8b", False)
    a("s_waitcnt vmcnt(0)")
    a.label("L_p1_h8b")
    a("s_barrier")
    br_wave(a, "eq", 11, "L_p1_h11")
    a("s_cmp_eq_u32 s73, 1"); a("s_cbranch_scc0 L_p1_end")
    helpers.job_run(a)
    stamp(a, 6)
    a("s_branch L_p1_end2")
    a.label("L_p1_h11")
    a("s_cmp_eq_u32 s73, 2"); a("s_cbranch_scc0 L_p1_h11b")
    a("s_waitcnt vmcnt(0)")
    p1.p1_mapping(a)
    a(f"s_lshl_b32 s31, s{p1.S_J}, 2")
    a("s_lshr_b32 s33, 0xcc88cc89, s31")
    a("s_and_b32 s33, s33, 15")
    a(f"s_lshl_b32 s31, s{p1.S_J}, 7")
    a(f"s_lshl_b32 s32, s{p1.S_J}, 10")
    arrive_last(a, C_SM, 31, None, F_SMD, 32, 8, target_sreg=33)
    a.label("L_p1_h11b")
    a(f"v_lshlrev_b32 v12, 10, v1")
    a(f"s_lshl_b32 s31, s{S_XCD}, 7")
    a(f"s_add_u32 s31, s31, {F_SMD:#x}")
    a(f"v_add_u32 v12, s31, v12")
    poll_flags(a, 12, 13, 0xff, sleep=8)
    a.label("L_p1_end")
    a("s_waitcnt vmcnt(0)")
    a.label("L_p1_end2")
    a("s_waitcnt lgkmcnt(0)")
    stamp(a, 7)
    a("s_barrier")
    stamp(a, 8)
    br_wave(a, "eq", 0, "L_p1_nf", False)
    a(f"s_lshl_b32 s31, s{p1.S_J}, 7")
    a(f"s_lshl_b32 s32, s{p1.S_J}, 10")
    arrive_last(a, C_P1, 31, 32, F_G, 32, 8)
    a.label("L_p1_nf")
    br_wave(a, "lt", 9, "L_p1_flagged")
    br_wave(a, "eq", 11, "L_p1_flagged")
    a("s_cmp_eq_u32 s73, 1"); a("s_cbranch_scc0 L_p1_flagged")
    a("s_waitcnt vmcnt(0)")
    a(f"s_lshl_b32 s31, s{S_XCD}, 7")
    arrive_last(a, C_PK, 31, 54, F_PKD, 31, 1)
    a.label("L_p1_flagged")

def phases_mid(a, stop_after):
    M = mid
    M.mid_mapping(a)
    a(f"v_lshlrev_b32 v{p1.V_L16}, 4, v1")
    M.ep_addrs(a)
    p1.tile_dma_voff(a, M.V_TD, "s4")
    br_wave(a, "ge", 9, "L_p2_nw")
    M.w_loads(a, 0, list(range(18)))
    a.label("L_p2_nw")
    br_wave(a, "eq", 11, "L_p2_np", False)
    a(f"v_lshlrev_b32 v12, 10, v1")
    a(f"s_lshl_b32 s31, s{S_XCD}, 7")
    a(f"s_add_u32 s31, s31, {F_G:#x}")
    a(f"v_add_u32 v12, s31, v12")
    poll_flags(a, 12, 13, 0xff)
    a("s_cmp_eq_u32 s2, 0"); a("s_cbranch_scc0 L_p2_ne")
    a("s_mov_b32 s31, 0")
    set_flag(a, WS_EPOCH, 31, 12, 13)
    a.label("L_p2_ne")
    a("s_waitcnt lgkmcnt(0)")
    a.label("L_p2_np")
    stamp(a, 10)
    a("s_barrier")
    M.p2_ostage(a)
    a("s_waitcnt vmcnt(0)")
    a("s_barrier")
    br_wave(a, "eq", 11, "L_p2_b")
    M.p2_ostage_compute(a)
    br_wave(a, "ge", 9, "L_p2_nx")
    M.xres_loads(a, p1.XS, None, M.XR)
    a.label("L_p2_nx")
    a("s_waitcnt lgkmcnt(0)")
    a.label("L_p2_b")
    stamp(a, 11)
    a("s_barrier")
    br_wave(a, "ge", 9, "L_p2_c")
    M.small_gemm(a, next_m=1)
    a("s_waitcnt vmcnt(9)")
    M.p2_epilogue(a)
    a("s_waitcnt lgkmcnt(0)")
    a.label("L_p2_c")
    stamp(a, 12)
    a("s_barrier")
    M.coop_store(a, M.L_HS, HB, HSTAT)
    a("s_waitcnt vmcnt(0)")
    a("s_barrier")
    br_wave(a, "eq", 11, "L_p2_f", False)
    M.flag_idx128(a, F_P2)
    a.label("L_p2_f")
    stamp(a, 13)
    br_wave(a, "ge", 9, "L_p2b_nw")
    M.w_loads(a, 1, list(range(9, 18)))
    a.label("L_p2b_nw")
    br_wave(a, "eq", 10, "L_p2b_nc", False)
    M.c1_wave(a)
    a.label("L_p2b_nc")
    br_wave(a, "eq", 11, "L_p2b_np", False)
    a(f"s_lshl_b32 s31, s{M.S_RB32}, 9")
    a(f"s_add_u32 s31, s31, {F_P2:#x}")
    a(f"v_lshlrev_b32 v12, 7, v1")
    a(f"v_add_u32 v12, s31, v12")
    poll_flags(a, 12, 13, 0xf)
    a("s_waitcnt lgkmcnt(0)")
    a.label("L_p2b_np")
    a("s_barrier")
    br_wave(a, "ge", 9, "L_p2b_b")
    a(f"s_mul_i32 s33, s{M.S_RB32}, 9216")
    a(f"s_add_u32 s33, s33, {HB:#x}")
    p1.tile_dma(a, M.V_TD, 33, 2304, 4, M.L_TILE)
    a("s_waitcnt vmcnt(0)")
    a.label("L_p2b_b")
    br_wave(a, "eq", 9, "L_p2b_ns", False)
    M.row_stats_wave(a, HSTAT, True)
    a.label("L_p2b_ns")
    a("s_waitcnt lgkmcnt(0)")
    a("s_barrier")
    br_wave(a, "ge", 9, "L_p2b_h")
    M.small_gemm(a, next_m=2)
    M.p2b_epilogue(a)
    a("s_waitcnt lgkmcnt(0)")
    a("s_branch L_p2b_c")
    a.label("L_p2b_h")
    br_wave(a, "eq", 10, "L_p2b_c", False)
    mlp.pk_wait(a)
    a.label("L_p2b_c")
    a("s_barrier")
    M.coop_store(a, M.L_STG, HH, None)
    a("s_waitcnt vmcnt(0)")
    a("s_barrier")
    br_wave(a, "eq", 11, "L_p2b_f", False)
    M.flag_idx128(a, F_P2B)
    a.label("L_p2b_f")
    stamp(a, 14)
    br_wave(a, "ge", 9, "L_p3_nw")
    M.w_loads(a, 2, list(range(9, 18)))
    a.label("L_p3_nw")
    br_wave(a, "eq", 11, "L_p3_np", False)
    a(f"s_lshl_b32 s31, s{M.S_RB32}, 2")
    a(f"s_sub_u32 s31, s31, 4")
    a(f"v_add_u32 v12, s31, v1")
    a(f"v_max_i32 v12, 0, v12")
    a(f"v_min_i32 v12, 255, v12")
    a(f"v_lshlrev_b32 v12, 7, v12")
    a(f"v_add_u32 v12, {F_P2B:#x}, v12")
    poll_flags(a, 12, 13, 0xfff)
    a.label("L_p3_np")
    a("s_barrier")
    br_wave(a, "ge", 9, "L_p3_b")
    M.p3_tile_dma(a)
    a("s_waitcnt vmcnt(0)")
    a.label("L_p3_b")
    a("s_barrier")
    br_wave(a, "ge", 9, "L_p3_h")
    M.small_gemm(a)
    M.p3_epilogue(a)
    a("s_waitcnt lgkmcnt(0)")
    a("s_branch L_p3_c")
    a.label("L_p3_h")
    br_wave(a, "eq", 11, "L_p3_c")
    br_wave(a, "eq", 10, "L_p3_h4")
    if WARM: mlp.l2_warm(a, W3P, 150)
    a("s_branch L_p3_c")
    a.label("L_p3_h4")
    if WARM: mlp.l2_warm(a, W4P, 150)
    a.label("L_p3_c")
    a("s_barrier")
    M.coop_store(a, M.L_STG, X1, X1STAT)
    a("s_waitcnt vmcnt(0)")
    a("s_barrier")
    br_wave(a, "eq", 11, "L_p3_f", False)
    M.flag_idx128(a, F_P3)
    a.label("L_p3_f")
    stamp(a, 15)

def phase_mlp(a):
    Q = mlp
    Q.mlp_prologue(a)
    st = Stream(3, Q.DEPTH, Q.WR, p1.V_L16, Q.S_SO, 3072)
    br_wave(a, "eq", 9, "L_m_nc", False)
    Q.c3_wave(a)
    a.label("L_m_nc")
    for u in range(2):
        for x in st.loads(u): a(x)
    br_wave(a, "eq", 11, "L_m_np", False)
    a(f"s_lshl_b32 s31, s{Q.S_RB}, 10")
    a(f"s_add_u32 s31, s31, {F_P3:#x}")
    a(f"v_lshlrev_b32 v12, 7, v1")
    a(f"v_add_u32 v12, s31, v12")
    poll_flags(a, 12, 13, 0xff)
    a.label("L_m_np")
    a("s_barrier")
    br_wave(a, "ge", 9, "L_m_nd")
    a(f"s_mul_i32 s33, s{Q.S_RB}, {64*288}")
    a(f"s_add_u32 s33, s33, {X1:#x}")
    p1.tile_dma(a, Q.V_TD, 33, 2304, 8, Q.L_X1)
    a.label("L_m_nd")
    br_wave(a, "eq", 11, "L_m_ns", False)
    Q.row_stats(a)
    a.label("L_m_ns")
    a("s_barrier")
    for u in range(2, Q.DEPTH):
        for x in st.loads(u): a(x)
    a(f"s_waitcnt vmcnt({3*(Q.DEPTH-2)})")
    br_wave(a, "eq", 9, "L_m_nc2", False)
    Q.c3_wave_finish(a)
    a.label("L_m_nc2")
    br_wave(a, "eq", 11, "L_m_ns2", False)
    Q.row_stats_finish(a)
    a.label("L_m_ns2")
    for r in range(48): a(f"v_mov_b32 v{Q.ACC+r}, 0")
    a("s_waitcnt lgkmcnt(0)")
    a("s_barrier")
    stamp(a, 16)
    for x in act_reads(Q.XF, 0, 4, p1.V_XE, p1.V_XO, 0): a(x)
    gemm_stream(a, st, Q, first=True)
    stamp(a, 17)
    Q.gemm1_epilogue(a)
    a("s_waitcnt lgkmcnt(0)")
    a("s_barrier")
    stamp(a, 18)
    p1.frag_addrs(a, p1.V_XE, p1.V_XO, Q.L_G)
    for r in range(48): a(f"v_mov_b32 v{Q.ACC+r}, 0")
    for x in act_reads(Q.XF, 0, 4, p1.V_XE, p1.V_XO, 0): a(x)
    gemm_stream(a, st, Q, first=False)
    stamp(a, 19)
    Q.gemm2_epilogue(a)
    a("s_waitcnt lgkmcnt(0)")
    a("s_barrier")
    Q.part_store(a)
    a("s_waitcnt vmcnt(0)")
    a("s_barrier")
    stamp(a, 20)
    br_wave(a, "eq", 11, "L_m_nf", False)
    a(f"s_lshl_b32 s31, s{Q.S_RB}, 3")
    a(f"s_add_u32 s31, s31, s{Q.S_J8}")
    a("s_lshl_b32 s31, s31, 7")
    set_flag(a, F_MLP, 31, 12, 13)
    a(f"s_lshl_b32 s31, s{Q.S_RB}, 10")
    a(f"s_add_u32 s31, s31, {F_MLP:#x}")
    a(f"v_lshlrev_b32 v12, 7, v1")
    a(f"v_add_u32 v12, s31, v12")
    poll_flags(a, 12, 13, 0xff)
    a.label("L_m_nf")
    a("s_barrier")
    stamp(a, 21)
    Q.final_reduce(a)
    stamp(a, 22)

def gemm_stream(a, st, Q, first):
    D, NB, NR = st.D, st.NB, 4
    base = 0 if first else 18
    acc_of = lambda t, rt: Q.ACC + 16 * t + 4 * rt
    for ks in range(18):
        n = base + ks
        slot = n % D
        cur = ks & 1; nxt = 1 - cur
        mf = []
        for rt in range(NR):
            for t in range(NB):
                x = Q.XF + 4 * (cur * NR + rt); w = st.reg(slot, t)
                mf.append(mfma(acc_of(t, rt), w, x))
        remaining = 36 - (n + 1)
        a(f"s_waitcnt vmcnt({min(D - 1, remaining)*NB}) lgkmcnt(0)")
        if ks < 17:
            bse = p1.V_XO if (ks + 1) & 1 else p1.V_XE
            rd = [f"ds_read_b128 v[{Q.XF+4*(nxt*NR+rt)}:{Q.XF+4*(nxt*NR+rt)+3}], v{bse} offset:{rt*18432 + ((ks+1)>>1)*128}" for rt in range(NR)]
        else: rd = []
        interleave(a, mf, rd, lead=1, per=2)
        if n + D < 36:
            if n + D == 18:
                a(f"s_add_u32 s{st.soff}, s{st.soff}, {W4P - W3P - 18*3072:#x}")
            for x in st.loads(slot): a(x)

TLB = False
WARM = False
def tlb_touch(a):
    L = a.newlabel("Ltlb")
    br_wave(a, "eq", 10, L, False)
    a("s_load_dwordx4 s[36:39], s[0:1], 48")
    a("s_load_dwordx4 s[40:43], s[0:1], 32")
    a("s_load_dwordx2 s[44:45], s[0:1], 16")
    a("v_lshlrev_b32 v12, 21, v1")
    a("s_mov_b64 exec, 0xffffff")
    a(f"buffer_load_dword v164, v12, s[{SRD_WS}:{SRD_WS+3}], 0 offen")
    a("s_mov_b64 exec, 0x3")
    a(f"buffer_load_dword v165, v12, s[{SRD_OUT}:{SRD_OUT+3}], 0 offen")
    a("s_waitcnt lgkmcnt(0)")
    a("s_mov_b64 exec, 0x7")
    a("global_load_dword v166, v12, s[36:37]")
    a("global_load_dword v167, v12, s[38:39]")
    a("s_mov_b64 exec, 0x1")
    a("global_load_dword v163, v12, s[40:41]")
    a("global_load_dword v162, v12, s[42:43]")
    a("global_load_dword v161, v12, s[44:45]")
    a("s_mov_b64 exec, -1")
    a(f"s_load_dword s{S_T}, s[34:35], 0")
    a.label(L)

PRELUDE = None
RT = False
def build(stop_after="ALL"):
    a = Asm()
    K = NAME + "_kernel"
    a.label(K)
    p1.prologue(a)
    if common.STAMP_ON:
        for i in range(common.NSTAMP): a(f"s_mov_b32 s{74+i}, 0")
    stamp(a, 0)
    if common.STAMP_ON or RT:
        a("s_memrealtime s[100:101]"); a("s_waitcnt lgkmcnt(0)"); a("s_mov_b32 s99, s100")
    if TLB: tlb_touch(a)
    phase_p01(a, K)
    phases_mid(a, stop_after)
    phase_mlp(a)
    if common.STAMP_ON:
        a("s_memrealtime s[100:101]"); a("s_waitcnt lgkmcnt(0)"); a("s_mov_b32 s98, s100")
    if RT:
        a("s_cmp_eq_u32 s3, 0"); a("s_cbranch_scc0 L_exit")
        a("s_memrealtime s[100:101]")
        a("s_load_dwordx2 s[4:5], s[0:1], 72")
        a("s_waitcnt lgkmcnt(0)")
        a("s_mov_b64 exec, 1")
        a("v_mov_b32 v2, s100"); a("v_mov_b32 v3, 0")
        a("global_atomic_umax v3, v2, s[4:5] sc1")
        a("s_not_b32 s99, s99")
        a("v_mov_b32 v2, s99")
        a("global_atomic_umax v3, v2, s[4:5] offset:4 sc1")
    stamp_dump(a)
    a.label("L_exit")
    a("s_endpgm")
    a.label("L_code_end")
    n = a.fix_hazards()
    errs = a.check_waits([K])
    for e in errs: print("WAITCHECK:", e)
    hdr = open("cdna_kernels/" + NAME + ".s.ref").read().split("; Override launch")[0]
    txt = hdr + "; @launch grid=(256,1,1) block=(768,1,1) lds=163840\n"
    txt += '.amdgcn_target "amdgcn-amd-amdhsa--gfx950"\n.text\n'
    txt += f".globl {K}\n.p2align 8\n.type {K},@function\n"
    txt += a.text()
    txt += f""".section .rodata,"a"
.p2align 6
.amdhsa_kernel {K}
  .amdhsa_next_free_vgpr 168
  .amdhsa_next_free_sgpr 102
  .amdhsa_accum_offset 168
  .amdhsa_group_segment_fixed_size 0
  .amdhsa_kernarg_size 88
  .amdhsa_user_sgpr_count 2
  .amdhsa_user_sgpr_kernarg_segment_ptr 1
  .amdhsa_system_sgpr_workgroup_id_x 1
  .amdhsa_float_denorm_mode_32 3
.end_amdhsa_kernel
"""
    return txt, n

if __name__ == "__main__":
    if "--stamp" in sys.argv:
        common.STAMP_ON = True; sys.argv.remove("--stamp")
    if "--nowarm" in sys.argv:
        WARM = False; sys.argv.remove("--nowarm")
    if "--tlb" in sys.argv:
        TLB = True; sys.argv.remove("--tlb")
    if "--rt" in sys.argv:
        RT = True; sys.argv.remove("--rt")
    stop = sys.argv[1] if len(sys.argv) > 1 else "ALL"
    out = sys.argv[2] if len(sys.argv) > 2 else "k.s"
    txt, n = build(stop)
    open(out, "w").write(txt)
    print("nops inserted:", n, "bytes:", len(txt))
```

```python
from common import *
from p1 import XS, WSR, WQ, SRC, finish_epoch

def div_const_s(a, dst, src, mul, sh):
    a(f"s_mul_i32 s{dst}, s{src}, {mul}")
    a(f"s_lshr_b32 s{dst}, s{dst}, {sh}")

P0SCR = LDS_A1 + 16384
def p0_issue(a):
    a.comment("---- P0: wqkv prepack job (issue) ----")
    div_const_s(a, 43, 2, 3641, 16)
    a("s_mul_i32 s42, s43, 18")
    a("s_sub_u32 s42, s2, s42")
    a("s_sub_u32 s44, s3, 8")
    a("s_lshl_b32 s40, s43, 2")
    a("s_add_u32 s40, s40, s44")
    a("s_mul_i32 s40, s40, 18")
    a("s_add_u32 s40, s40, s42")
    a(f"s_mul_i32 s45, s42, {32*3456}")
    a("s_lshl_b32 s46, s43, 7")
    a("s_add_u32 s45, s45, s46")
    a(f"s_mul_i32 s46, s44, {8*3456}")
    a("s_add_u32 s45, s45, s46")
    a(f"s_mul_i32 s47, s44, 6144")
    a(f"s_add_u32 s47, s47, {P0SCR}")
    T = 12
    for r in range(3):
        a(f"v_add_u32 v{T}, {64*r}, v1")
        a(f"v_mul_u32_u24 v{T+1}, 171, v{T}")
        a(f"v_lshrrev_b32 v{T+1}, 13, v{T+1}")
        a(f"v_mul_u32_u24 v{T+2}, 48, v{T+1}")
        a(f"v_sub_u32 v{T+2}, v{T}, v{T+2}")
        a(f"v_lshrrev_b32 v{T+3}, 4, v{T+2}")
        a(f"v_and_b32 v{T+4}, 15, v{T+2}")
        a(f"v_mul_u32_u24 v{T+1}, 3456, v{T+1}")
        a(f"v_lshl_add_u32 v{T+1}, v{T+4}, 4, v{T+1}")
        a(f"v_add_u32 v{T+3}, 1, v{T+3}")
        a(f"v_cmp_eq_u32 vcc, 3, v{T+3}")
        a(f"v_cndmask_b32 v{T+3}, v{T+3}, 0, vcc")
        a(f"v_mul_u32_u24 v{T+3}, 1152, v{T+3}")
        a(f"v_add_u32 v{20+r}, v{T+1}, v{T+3}")
    stamp(a, 1)
    for g in range(2):
        for r in range(3):
            a(f"s_add_u32 m0, s47, {1024*(3*g+r)}")
            a("s_nop 0")
            a(f"buffer_load_dwordx4 v{20+r}, {WQ}, s45 offen lds")
        if g == 0: a(f"s_add_u32 s45, s45, {4*3456}")
    stamp(a, 10)
    a("s_lshl_b32 s46, s44, 3")
    a("s_lshr_b32 s48, 0x10080800, s46"); a("s_and_b32 s48, s48, 0xff")
    a("s_lshr_b32 s49, 0x08280020, s46"); a("s_and_b32 s49, s49, 0xff")
    a("s_lshl_b32 s50, s43, 4")
    a("s_lshl_b32 s51, s44, 5")
    a("s_add_u32 s50, s50, s51")
    a(f"s_add_u32 s50, s50, {P0SCR}")
    a(f"v_lshrrev_b32 v{T}, 4, v1")
    a(f"v_lshlrev_b32 v{T}, 3, v{T}")
    a(f"v_bfe_u32 v{T+1}, v1, 2, 2")
    a(f"v_add_u32 v{T}, v{T}, v{T+1}")
    a(f"v_mul_u32_u24 v{T}, 768, v{T}")
    a(f"v_add_u32 v{T}, s50, v{T}")
    a(f"v_and_b32 v{T+1}, 3, v1")
    a(f"v_lshl_add_u32 v{T+2}, v{T+1}, 3, v{T}")
    a(f"v_add_u32 v{T+2}, s48, v{T+2}")
    a(f"v_min_u32 v{T+1}, 2, v{T+1}")
    a(f"v_lshlrev_b32 v{T+1}, 8, v{T+1}")
    a(f"v_add3_u32 v{T+3}, v{T}, v{T+1}, s49")
    a("s_lshl_b32 s46, s40, 12")
    a(f"s_add_u32 s46, s46, {WQP:#x}")
    a(f"v_lshlrev_b32 v{T+4}, 4, v1")
    stamp(a, 11)
    a("s_waitcnt vmcnt(0)")
    stamp(a, 2)

def helper_arrive(a):
    L = a.newlabel("Lha")
    a(f"v_mov_b32 v12, {LDS_MISC + 16}")
    a("v_mov_b32 v13, 1")
    a("s_mov_b64 exec, 1")
    a("ds_add_rtn_u32 v14, v12, v13")
    a("s_waitcnt lgkmcnt(0)")
    a("v_readfirstlane_b32 s31, v14")
    a("s_mov_b64 exec, -1")
    a("s_cmp_eq_u32 s31, 3")
    a(f"s_cbranch_scc0 {L}")
    a("s_lshl_b32 s31, s2, 7")
    set_flag(a, F_P0D, 31, 12, 13)
    a.label(L)

def p0_finish(a):
    T = 12
    F = 28
    for t in range(3):
        a(f"ds_read_b64_tr_b16 v[{F+4*t}:{F+4*t+1}], v{T+2} offset:{256*t}")
        a(f"ds_read_b64_tr_b16 v[{F+4*t+2}:{F+4*t+3}], v{T+2} offset:{256*t+4*768}")
    a(f"ds_read_b64_tr_b16 v[{F+12}:{F+13}], v{T+3}")
    a(f"ds_read_b64_tr_b16 v[{F+14}:{F+15}], v{T+3} offset:{4*768}")
    a("s_mov_b32 s50, 0xf000f000"); a("s_mov_b32 s51, 0xf000f000")
    a("s_waitcnt lgkmcnt(0)")
    for r in range(4):
        a(f"v_cndmask_b32 v{F+12+r}, v{F+12+r}, 0, s[50:51]")
    for t in range(4):
        a(f"buffer_store_dwordx4 v[{F+4*t}:{F+4*t+3}], v{T+4}, {WSR}, s46 offen offset:{1024*t} sc1")
    a("s_waitcnt vmcnt(0)")
    stamp(a, 5)
    helper_arrive(a)

def code_prefetch(a, code_start, code_end):
    a.comment("---- code prefetch (WGs >= 144, wave 8): 4 KB chunk per WG ----")
    T = 12
    a("s_getpc_b64 s[32:33]")
    a.label("L_pc_ref")
    a(f"s_sub_u32 s32, s32, L_pc_ref-{code_start}")
    a("s_subb_u32 s33, s33, 0")
    a(f"s_sub_u32 s34, s{S_LOC}, 18")
    a("s_lshl_b32 s34, s34, 12")
    a(f"v_lshlrev_b32 v{T}, 6, v1")
    a(f"v_add_u32 v{T}, s34, v{T}")
    a(f"v_min_u32 v{T}, {code_end}-{code_start}-4, v{T}")
    a(f"global_load_dword v160, v{T}, s[32:33]")

def zero_kv(a):
    T = 12
    Lskip = a.newlabel("Lz")
    a(f"s_cmp_lt_u32 s2, 248")
    a(f"s_cbranch_scc1 {Lskip}")
    for r in range(4): a(f"v_mov_b32 v{32+r}, 0")
    a(f"v_lshlrev_b32 v{T}, 4, v1")
    a(f"s_sub_u32 s33, s2, 248")
    a(f"s_mul_i32 s31, s33, {4*KV_HEAD}")
    a(f"s_add_u32 s31, s31, {KV:#x}")
    for i in range(6):
        if i == 4:
            a(f"s_add_u32 s31, s31, 4096")
        a(f"buffer_store_dwordx4 v[32:35], v{T}, {WSR}, s31 offen offset:{1024*(i%4)} sc1")
    a(f"s_lshl_b32 s31, s33, 7")
    a(f"s_add_u32 s31, s31, {C_P1:#x}")
    a("s_mov_b64 exec, 1")
    a(f"v_mov_b32 v{T}, 0")
    a(f"buffer_store_dword v32, v{T}, {WSR}, s31 offen sc1")
    a(f"buffer_store_dword v32, v{T}, {WSR}, s31 offen offset:{C_PK - C_P1} sc1")
    a(f"buffer_store_dword v32, v{T}, {WSR}, s31 offen offset:{C_SM - C_P1} sc1")
    a(f"buffer_store_dword v32, v{T}, {WSR}, s31 offen offset:{C_PK4 - C_P1} sc1")
    a("s_mov_b64 exec, -1")
    a("s_waitcnt vmcnt(0)")
    a.label(Lskip)

S_RS = 42; S_SRC0 = 43; S_D = 44
S_DSTEP = 48; S_CS = 49; S_ACT = 50; S_SCR = 51

def job_common_init(a):
    a(f"s_mov_b32 s{S_ACT}, 0")
    a(f"s_mov_b32 s{S_CS}, 0")
    a(f"s_mov_b32 s{S_RS}, 1152")

def job_setup_small(a, scr):
    job_common_init(a)
    a("s_load_dwordx2 s[32:33], s[0:1], 16")
    a("s_load_dwordx4 s[36:39], s[0:1], 32")
    a("s_sub_u32 s60, s2, 144")
    div_const_s(a, 58, 60, 19, 9)
    a("s_mul_i32 s59, s58, 27")
    a("s_sub_u32 s59, s60, s59")
    div_const_s(a, 52, 59, 57, 9)
    a("s_mul_i32 s53, s52, 9")
    a("s_sub_u32 s53, s59, s53")
    a("s_cmp_lt_u32 s60, 81")
    a(f"s_cselect_b32 s{S_ACT}, 1, 0")
    a("s_waitcnt lgkmcnt(0)")
    a("s_cmp_eq_u32 s58, 1")
    a("s_cselect_b32 s32, s36, s32"); a("s_cselect_b32 s33, s37, s33")
    a("s_cmp_eq_u32 s58, 2")
    a("s_cselect_b32 s32, s38, s32"); a("s_cselect_b32 s33, s39, s33")
    srd(a, SRD_SRC, 32, 663552)
    a(f"s_mul_i32 s{S_SRC0}, s52, {192*1152}")
    a(f"s_lshl_b32 s54, s53, 7")
    a(f"s_add_u32 s{S_SRC0}, s{S_SRC0}, s54")
    for tt in range(4):
        a(f"s_lshl_b32 s54, s53, 2")
        a(f"s_add_u32 s54, s54, {tt}")
        a("s_mul_i32 s54, s54, 18")
        a("s_mul_i32 s55, s52, 6")
        a("s_add_u32 s54, s54, s55")
        a("s_lshl_b32 s54, s54, 10")
        a(f"s_mul_i32 s55, s58, {WSP_SZ}")
        a("s_add_u32 s54, s54, s55")
        a(f"s_add_u32 s{S_D+tt}, s54, {WSP:#x}")
    a(f"s_mov_b32 s{S_DSTEP}, 1024")
    a(f"s_mul_i32 s54, s52, 2304")
    a(f"s_lshl_b32 s55, s53, 8")
    a("s_add_u32 s54, s54, s55")
    a(f"s_add_u32 s54, s54, {C1P:#x}")
    a("s_cmp_eq_u32 s58, 1")
    a(f"s_cselect_b32 s{S_CS}, s54, 0")
    a(f"s_mov_b32 s{S_SCR}, {scr}")

def job_setup_big(a, which, scr):
    job_common_init(a)
    a(f"s_load_dwordx2 s[4:5], s[0:1], {48 if which == 3 else 56}")
    if which == 3:
        a("s_sub_u32 s59, s2, 144")
        a("s_lshl_b32 s59, s59, 1")
        a("s_add_u32 s59, s59, s3")
        a("s_sub_u32 s59, s59, 9")
        div_const_s(a, 58, 59, 19, 9)
        a("s_mul_i32 s60, s58, 27")
        a("s_sub_u32 s60, s59, s60")
        a("s_cmp_lt_u32 s59, 216")
        a(f"s_cselect_b32 s{S_ACT}, 1, 0")
    else:
        a(f"s_mov_b32 s58, s{S_XCD}")
        a(f"s_mov_b32 s60, s{S_LOC}")
        a(f"s_cmp_lt_u32 s{S_LOC}, 27")
        a(f"s_cselect_b32 s{S_ACT}, 1, 0")
    div_const_s(a, 52, 60, 57, 9)
    a("s_mul_i32 s53, s52, 9")
    a(f"s_sub_u32 s53, s60, s53")
    for tt in range(4):
        a(f"s_lshl_b32 s54, s53, 2")
        a(f"s_add_u32 s54, s54, {tt}")
        div_const_s(a, 55, 54, 43, 7)
        a("s_mul_i32 s56, s55, 3")
        a("s_sub_u32 s56, s54, s56")
        a(f"s_mul_i32 s57, s58, 12")
        a("s_add_u32 s57, s57, s55")
        a("s_mul_i32 s57, s57, 55296")
        a("s_lshl_b32 s56, s56, 10")
        a("s_add_u32 s57, s57, s56")
        a(f"s_mul_i32 s56, s52, {6*3072}")
        a("s_add_u32 s57, s57, s56")
        a(f"s_add_u32 s{S_D+tt}, s57, {(W3P if which == 3 else W4P):#x}")
    a(f"s_mov_b32 s{S_DSTEP}, 3072")
    a("s_waitcnt lgkmcnt(0)")
    if which == 3:
        srd(a, SRD_SRC, 4, 576 * 9216)
        a(f"s_mov_b32 s{S_RS}, 9216")
        a(f"s_mul_i32 s{S_SRC0}, s52, {192*9216}")
        a(f"s_mul_i32 s54, s58, 1152")
        a(f"s_add_u32 s{S_SRC0}, s{S_SRC0}, s54")
        a(f"s_lshl_b32 s54, s53, 7")
        a(f"s_add_u32 s{S_SRC0}, s{S_SRC0}, s54")
        a(f"s_mul_i32 s{S_CS}, s52, 18432")
        a(f"s_mul_i32 s54, s58, 2304")
        a(f"s_add_u32 s{S_CS}, s{S_CS}, s54")
        a(f"s_lshl_b32 s54, s53, 8")
        a(f"s_add_u32 s{S_CS}, s{S_CS}, s54")
        a(f"s_add_u32 s{S_CS}, s{S_CS}, {C3P:#x}")
    else:
        srd(a, SRD_SRC, 4, 4608 * 1152)
        a(f"s_mul_i32 s{S_SRC0}, s58, {576*1152}")
        a(f"s_mul_i32 s54, s52, {192*1152}")
        a(f"s_add_u32 s{S_SRC0}, s{S_SRC0}, s54")
        a(f"s_lshl_b32 s54, s53, 7")
        a(f"s_add_u32 s{S_SRC0}, s{S_SRC0}, s54")
    a(f"s_mov_b32 s{S_SCR}, {scr}")

JD = 44
JF = 20
JC = 36
def job_loads(a):
    a(f"v_lshrrev_b32 v12, 3, v1")
    a(f"v_mul_lo_u32 v12, v12, s{S_RS}")
    a(f"v_and_b32 v13, 7, v1")
    a(f"v_lshl_add_u32 v140, v13, 4, v12")
    a(f"s_mov_b32 s52, s{S_SRC0}")
    a(f"s_lshl_b32 s53, s{S_RS}, 3")
    for n in range(24):
        a(f"buffer_load_dwordx4 v[{JD+4*n}:{JD+4*n+3}], v140, {SRC}, s52 offen")
        a(f"s_add_u32 s52, s52, s53")

def job_tr(a):
    a(f"v_lshrrev_b32 v12, 3, v1")
    a(f"v_mul_u32_u24 v12, 144, v12")
    a(f"v_and_b32 v13, 7, v1")
    a(f"v_lshl_add_u32 v141, v13, 4, v12")
    a(f"v_add_u32 v141, s{S_SCR}, v141")
    a(f"v_lshrrev_b32 v12, 4, v1")
    a(f"v_lshlrev_b32 v12, 3, v12")
    a(f"v_bfe_u32 v13, v1, 2, 2")
    a(f"v_add_u32 v12, v12, v13")
    a(f"v_mul_u32_u24 v12, 144, v12")
    a(f"v_and_b32 v13, 3, v1")
    a(f"v_lshl_add_u32 v142, v13, 3, v12")
    a(f"v_add_u32 v142, s{S_SCR}, v142")
    for t in range(4): a(f"v_mov_b32 v{JC+t}, 0")
    a(f"s_mov_b32 s54, {ONES_BF16:#x}")
    for u in range(6):
        a(f"s_waitcnt vmcnt({20-4*u})")
        b = JD + 16 * u
        for i in range(4):
            a(f"ds_write_b128 v141, v[{b+4*i}:{b+4*i+3}] offset:{1152*i}")
        a("s_waitcnt lgkmcnt(0)")
        for tt in range(4):
            a(f"ds_read_b64_tr_b16 v[{b+4*tt}:{b+4*tt+1}], v142 offset:{32*tt}")
            a(f"ds_read_b64_tr_b16 v[{b+4*tt+2}:{b+4*tt+3}], v142 offset:{32*tt+576}")
        a("s_waitcnt lgkmcnt(0)")
        for r in range(4):
            for tt in range(4):
                a(f"v_dot2_f32_bf16 v{JC+tt}, v{b+4*tt+r}, s54, v{JC+tt}")

def job_stores(a):
    a(f"v_lshlrev_b32 v143, 4, v1")
    for u in range(6):
        b = JD + 16 * u
        for tt in range(4):
            a(f"buffer_store_dwordx4 v[{b+4*tt}:{b+4*tt+3}], v143, {WSR}, s{S_D+tt} offen sc1")
            a(f"s_add_u32 s{S_D+tt}, s{S_D+tt}, s{S_DSTEP}")
    Ls = a.newlabel("Ljs")
    a(f"s_cmp_eq_u32 s{S_CS}, 0")
    a(f"s_cbranch_scc1 {Ls}")
    for sw in ("v_permlane32_swap_b32", "v_permlane16_swap_b32"):
        for tt in range(4): a(f"v_mov_b32 v{12+tt}, v{JC+tt}")
        for tt in range(4): a(f"{sw} v{JC+tt}, v{12+tt}")
        for tt in range(4): a(f"v_add_f32 v{JC+tt}, v{JC+tt}, v{12+tt}")
    a(f"v_lshlrev_b32 v12, 2, v1")
    a(f"s_mov_b64 exec, s[{M_Q0}:{M_Q0+1}]")
    for tt in range(4):
        a(f"buffer_store_dword v{JC+tt}, v12, {WSR}, s{S_CS} offen offset:{64*tt} sc1")
    a("s_mov_b64 exec, -1")
    a.label(Ls)
```

```python
from common import *
from gemm import *

XS = f"s[{SRD_X}:{SRD_X+3}]"; WQ = f"s[{SRD_W}:{SRD_W+3}]"; SRC = f"s[{SRD_SRC}:{SRD_SRC+3}]"

S_J = 48; S_RBK = 49
def prologue(a):
    a("s_cmp_ge_u32 s2, 256")
    a("s_cbranch_scc1 L_exit")
    a("s_load_dwordx4 s[4:7], s[0:1], 0")
    a("s_load_dwordx2 s[32:33], s[0:1], 64")
    a("s_load_dwordx2 s[34:35], s[0:1], 80")
    a("v_lshrrev_b32 v2, 6, v0")
    a("v_and_b32 v1, 63, v0")
    a("v_readfirstlane_b32 s3, v2")
    a(f"s_and_b32 s{S_XCD}, s2, 7")
    a(f"s_lshr_b32 s{S_LOC}, s2, 3")
    a(f"s_mov_b32 s{M_Q0}, 0xffff");     a(f"s_mov_b32 s{M_Q0+1}, 0")
    a(f"s_mov_b32 s{M_Q1}, 0xffff0000"); a(f"s_mov_b32 s{M_Q1+1}, 0")
    a(f"s_mov_b32 s{M_Q2}, 0");          a(f"s_mov_b32 s{M_Q2+1}, 0xffff")
    a(f"s_mov_b32 s{M_Q3}, 0");          a(f"s_mov_b32 s{M_Q3+1}, 0xffff0000")
    a("s_waitcnt lgkmcnt(0)")
    srd(a, SRD_X, 4, 2048 * 1152)
    srd(a, SRD_W, 6, 576 * 3456)
    srd(a, SRD_WS, 34, WS_SIZE)
    srd(a, SRD_OUT, 32, 2048 * 1152)
    a(f"s_load_dword s{S_T}, s[34:35], 0")
    p1_mapping(a)

def p1_mapping(a):
    a(f"s_and_b32 s48, s{S_XCD}, 1"); a("s_lshl_b32 s48, s48, 2"); a(f"s_and_b32 s31, s{S_LOC}, 3"); a("s_add_u32 s48, s48, s31")
    a(f"s_lshr_b32 s49, s{S_XCD}, 1"); a("s_lshl_b32 s49, s49, 3"); a(f"s_lshr_b32 s31, s{S_LOC}, 2"); a("s_add_u32 s49, s49, s31")

def finish_epoch(a):
    a(f"s_mul_i32 s{S_T}, s{S_T}, 1664525")
    a(f"s_add_u32 s{S_T}, s{S_T}, 1013904223")

def phi_many(a, pairs, tmp):
    G = 4
    for g in range(0, len(pairs), G):
        grp = pairs[g:g + G]
        for u in range(0, len(grp), 2):
            sr = grp[u][1]
            assert grp[u + 1][1] == sr + 1 and sr % 2 == 0
            a(f"v_pk_mul_f32 v[{tmp+u}:{tmp+u+1}], v[{sr}:{sr+1}], s[40:41]")
        for u in range(len(grp)): a(f"v_exp_f32 v{tmp+u}, v{tmp+u} clamp")
        for u in range(len(grp)): a(f"v_max_f32 v{tmp+4+u}, 0, v{grp[u][1]}")
        for u in range(0, len(grp), 2):
            a(f"v_pk_add_f32 v[{tmp+u}:{tmp+u+1}], v[{tmp+u}:{tmp+u+1}], s[42:43]")
        for u in range(0, len(grp), 2):
            d = grp[u][0]
            assert grp[u + 1][0] == d + 1 and d % 2 == 0
            a(f"v_pk_add_f32 v[{d}:{d+1}], v[{tmp+u}:{tmp+u+1}], v[{tmp+4+u}:{tmp+5+u}]")

def phi_consts(a):
    a(f"s_mov_b32 s40, {LOG2E:#x}"); a(f"s_mov_b32 s41, {LOG2E:#x}")
    a(f"s_mov_b32 s42, {EPS_1EM6:#x}"); a(f"s_mov_b32 s43, {EPS_1EM6:#x}")

V_XOFF = 2; V_L16 = 3
V_XE = 8; V_XO = 9
V_WA = 10
V_T0 = 12
XF = 20
ACC = 52
WR = 84
TT = 132
TMP = 148
RAW = 20

def p0_ln(a):
    a.comment("---- P0: layernorm of one row per wave ----")
    R0 = RAW
    for i in range(4): a(f"v_mov_b32 v{R0+4+i}, 0")
    a(f"s_lshl_b32 s31, s2, 3")
    a(f"s_add_u32 s31, s31, s3")
    a(f"s_mul_i32 s31, s31, 1152")
    a(f"v_lshlrev_b32 v{V_L16}, 4, v1")
    a(f"buffer_load_dwordx4 v[{R0}:{R0+3}], v{V_L16}, {XS}, s31 offen")
    a("s_mov_b64 exec, 0xff")
    a(f"buffer_load_dwordx4 v[{R0+4}:{R0+7}], v{V_L16}, {XS}, s31 offen offset:1024")
    a("s_mov_b64 exec, -1")
    A = V_T0
    for i in range(4): a(f"v_mov_b32 v{A+i}, 0")
    a(f"s_mov_b32 s32, {ONES_BF16:#x}")
    stamp(a, 1)
    a("s_waitcnt vmcnt(0)")
    stamp(a, 2)
    for i in range(8):
        a(f"v_dot2_f32_bf16 v{A+(i&1)}, v{R0+i}, s32, v{A+(i&1)}")
        a(f"v_dot2_f32_bf16 v{A+2+(i&1)}, v{R0+i}, v{R0+i}, v{A+2+(i&1)}")
    a(f"v_add_f32 v{A}, v{A}, v{A+1}")
    a(f"v_add_f32 v{A+1}, v{A+2}, v{A+3}")
    A1, A2 = A, A + 1
    for mod in ("quad_perm:[1,0,3,2]", "quad_perm:[2,3,0,1]", "row_half_mirror", "row_mirror"):
        a(f"v_add_f32_dpp v{A1}, v{A1}, v{A1} {mod} row_mask:0xf bank_mask:0xf")
        a(f"v_add_f32_dpp v{A2}, v{A2}, v{A2} {mod} row_mask:0xf bank_mask:0xf")
    for sw in ("v_permlane16_swap_b32", "v_permlane32_swap_b32"):
        a(f"v_mov_b32 v{A+2}, v{A1}"); a(f"v_mov_b32 v{A+3}, v{A2}")
        a(f"{sw} v{A1}, v{A+2}"); a(f"{sw} v{A2}, v{A+3}")
        a(f"v_add_f32 v{A1}, v{A1}, v{A+2}"); a(f"v_add_f32 v{A2}, v{A2}, v{A+3}")
    inv = f2u(1.0 / 576)
    a(f"v_mul_f32 v{A1}, {inv:#x}, v{A1}")
    a(f"v_mul_f32 v{A2}, {inv:#x}, v{A2}")
    a(f"v_fma_f32 v{A2}, -v{A1}, v{A1}, v{A2}")
    a(f"v_max_f32 v{A2}, 0, v{A2}")
    a(f"v_add_f32 v{A2}, {EPS_1EM5:#x}, v{A2}")
    a(f"v_rsq_f32 v{A+2}, v{A2}")
    a(f"v_mul_f32 v{A+4}, v{A1}, v{A+2}")
    a(f"v_sub_f32 v{A+4}, 0, v{A+4}")
    a(f"v_mov_b32 v{A+3}, v{A+2}")
    a(f"v_mov_b32 v{A+5}, v{A+4}")
    t = TMP
    for i in range(0, 8, 4):
        for u in range(4):
            r = R0 + i + u
            a(f"v_lshlrev_b32 v{t+2*u}, 16, v{r}")
            a(f"v_and_b32 v{t+2*u+1}, 0xffff0000, v{r}")
        for u in range(4):
            a(f"v_pk_fma_f32 v[{t+2*u}:{t+2*u+1}], v[{t+2*u}:{t+2*u+1}], v[{A+2}:{A+3}], v[{A+4}:{A+5}]")
        for u in range(4):
            a(f"v_cvt_pk_bf16_f32 v{R0+i+u}, v{t+2*u}, v{t+2*u+1}")
    a(f"s_add_u32 s31, s31, {XN:#x}")
    a(f"buffer_store_dwordx4 v[{R0}:{R0+3}], v{V_L16}, {WSR}, s31 offen sc1")
    a("s_mov_b64 exec, 0xff")
    a(f"buffer_store_dwordx4 v[{R0+4}:{R0+7}], v{V_L16}, {WSR}, s31 offen offset:1024 sc1")
    a("s_mov_b64 exec, -1")

def tile_dma_voff(a, vdst, layout, t=V_T0):
    a(f"s_lshl_b32 s31, s3, 6")
    a(f"v_add_u32 v{t}, s31, v1")
    a(f"v_mul_u32_u24 v{t+1}, 911, v{t}")
    a(f"v_lshrrev_b32 v{t+1}, 16, v{t+1}")
    a(f"v_mul_u32_u24 v{t+2}, 72, v{t+1}")
    a(f"v_sub_u32 v{t+2}, v{t}, v{t+2}")
    a(f"v_xor_b32 v{t+2}, v{t+2}, v{t+1}")
    if layout == "row":
        a(f"v_mul_u32_u24 v{t+1}, 1152, v{t+1}")
        a(f"v_lshl_add_u32 v{vdst}, v{t+2}, 4, v{t+1}")
    else:
        a(f"v_mul_u32_u24 v{t+3}, 57, v{t+2}")
        a(f"v_lshrrev_b32 v{t+3}, 10, v{t+3}")
        a(f"v_mul_u32_u24 v{t+4}, 18, v{t+3}")
        a(f"v_sub_u32 v{t+4}, v{t+2}, v{t+4}")
        a(f"v_mul_u32_u24 v{t+1}, 288, v{t+1}")
        a(f"v_lshl_add_u32 v{t+1}, v{t+4}, 4, v{t+1}")
        a(f"s_mov_b32 s31, 589824")
        a(f"v_mul_lo_u32 v{t+3}, v{t+3}, s31")
        a(f"v_add_u32 v{vdst}, v{t+1}, v{t+3}")

def tile_dma(a, vofs, s_src, group_stride, ngroups, lds_base, sc1=True, nt=False):
    a(f"s_lshl_b32 s31, s3, 10")
    if lds_base: a(f"s_add_u32 s31, s31, {lds_base}")
    for g in range(ngroups):
        a(f"s_mov_b32 m0, s31")
        a(f"s_add_u32 s31, s31, 9216")
        a(f"buffer_load_dwordx4 v{vofs}, {WSR}, s{s_src} offen{' sc1' if sc1 else ''}{' nt' if nt else ''} lds")
        a(f"s_add_u32 s{s_src}, s{s_src}, {group_stride}")

def frag_addrs(a, xe=V_XE, xo=V_XO, base=0, t=V_T0):
    a(f"v_and_b32 v{t}, 15, v1")
    a(f"v_lshrrev_b32 v{t+1}, 4, v1")
    a(f"v_and_b32 v{t+2}, 7, v{t}")
    a(f"v_mul_u32_u24 v{t+3}, 1152, v{t}")
    if base: a(f"v_add_u32 v{t+3}, {base}, v{t+3}")
    a(f"v_xor_b32 v{t+4}, v{t+1}, v{t+2}")
    a(f"v_lshl_add_u32 v{xe}, v{t+4}, 4, v{t+3}")
    a(f"v_or_b32 v{t+4}, 4, v{t+1}")
    a(f"v_xor_b32 v{t+4}, v{t+4}, v{t+2}")
    a(f"v_lshl_add_u32 v{xo}, v{t+4}, 4, v{t+3}")

S_A = 44

S_SO = 45; S_CNT = 47
LFLAG = LDS_MISC
LXCH = LDS_MISC + 64
QSTG = LDS_A1

def p1_wait_xn(a):
    a(f"s_lshl_b32 s31, s{S_RBK}, 10")
    a(f"s_add_u32 s31, s31, {F_XN:#x}")
    a(f"v_lshlrev_b32 v{V_T0}, 7, v1")
    a(f"v_add_u32 v{V_T0}, s31, v{V_T0}")
    poll_flags(a, V_T0, V_T0 + 1, 0xff)

def p1_wait_p0(a):
    a(f"s_mul_i32 s31, s{S_J}, 18")
    a(f"s_add_u32 s33, s{S_J}, {248-18}")
    a(f"v_add_u32 v{V_T0}, s31, v1")
    a(f"v_add_u32 v{V_T0+1}, s33, v1")
    a(f"v_cmp_lt_u32 vcc, 17, v1")
    a(f"v_cndmask_b32 v{V_T0}, v{V_T0}, v{V_T0+1}, vcc")
    a(f"v_lshlrev_b32 v{V_T0}, 7, v{V_T0}")
    a(f"v_add_u32 v{V_T0}, {F_P0D:#x}, v{V_T0}")
    poll_flags(a, V_T0, V_T0 + 1, (1 << 19) - 1, sleep=2)
    stamp(a, 9)

V_TD = 4
def p1_xn_dma(a):
    tile_dma_voff(a, V_TD, "row")
    a(f"s_mul_i32 s33, s{S_RBK}, {64*1152}")
    a(f"s_add_u32 s33, s33, {XN:#x}")
    tile_dma(a, V_TD, 33, 9216, 8, LDS_A0)

def p1_stream_setup(a, first_tile):
    a(f"s_lshl_b32 s31, s{S_J}, 2")
    a(f"s_add_u32 s31, s31, s{S_A}")
    a(f"s_mul_i32 s{S_SO}, s31, {18*4096}")
    a(f"s_add_u32 s{S_SO}, s{S_SO}, {WQP + first_tile*1024:#x}")
    a(f"v_lshlrev_b32 v{V_L16}, 4, v1")

def p1_gemm(a, w_is_A, acc_init):
    p1_xn_dma(a)
    L = a.newlabel("Lp1w")
    a("s_cmp_eq_u32 s3, 0"); a(f"s_cbranch_scc0 {L}")
    p1_wait_p0(a)
    a.label(L)
    a("s_barrier")
    st = Stream(2, 6, WR, V_L16, S_SO, 4096)
    for u in range(6):
        for x in st.loads(u): a(x)
    acc_init(a)
    a("s_waitcnt vmcnt(12)")
    a("s_barrier")
    stamp(a, 4)
    for x in act_reads(XF, 0, 4, V_XE, V_XO, 0): a(x)
    kloop(a, st, 4, XF, V_XE, V_XO, lambda t, rt: ACC + 16 * t + 4 * rt, w_is_A, 3, S_CNT)

def pack_frags(a, src, dst):
    for p in range(2):
        for u in range(2):
            r = src + 4 * (2 * p + u); d = dst + 4 * p + 2 * u
            a(f"v_cvt_pk_bf16_f32 v{d}, v{r}, v{r+1}")
            a(f"v_cvt_pk_bf16_f32 v{d+1}, v{r+2}, v{r+3}")

def odd_masks(a):
    a(f"s_and_b32 s56, s{S_A}, 1")
    a(f"s_sub_u32 s56, 0, s56")
    a(f"s_mov_b32 s57, s56")

def p1_kv(a):
    a.comment("---- P1 KV wave (tiles KM, VM) ----")
    a(f"s_mov_b32 s{S_A}, s3")
    p1_stream_setup(a, 0)
    frag_addrs(a)
    def init(a):
        for r in range(32): a(f"v_mov_b32 v{ACC+r}, 0")
    p1_gemm(a, [False, False], init)
    stamp(a, 5)
    phi_consts(a)
    KM, VM = ACC, ACC + 16
    phi_many(a, [(KM + i, KM + i) for i in range(16)], V_T0)
    KMf, VMf, Lf = XF, XF + 8, XF + 16
    pack_frags(a, KM, KMf); pack_frags(a, VM, VMf)
    T1, T2, T3, T4 = TT, TT + 4, TT + 8, TT + 12
    for p in range(2):
        a(mfma(T1, VMf + 4 * p, KMf + 4 * p, "0" if p == 0 else None))
    a(f"s_lshl_b32 s31, s{S_A}, 2")
    a(f"s_add_u32 s31, s31, {LFLAG}")
    a(f"v_mov_b32 v{V_T0}, s31")
    Lp = a.newlabel("Llf"); Ld = a.newlabel("Llfd")
    a(f"s_mov_b32 s{S_TO}, 0x100000")
    a.label(Lp)
    a(f"ds_read_b32 v{V_T0+1}, v{V_T0}")
    a("s_waitcnt lgkmcnt(0)")
    a(f"v_cmp_ne_u32 vcc, 0, v{V_T0+1}")
    a(f"s_cbranch_vccnz {Ld}")
    a(f"s_sub_u32 s{S_TO}, s{S_TO}, 1")
    a(f"s_cbranch_scc0 {Lp}")
    a.label(Ld)
    a(f"s_lshl_b32 s31, s{S_A}, 11")
    a(f"s_add_u32 s31, s31, {LXCH}")
    a(f"v_add_u32 v{V_T0}, s31, v{V_L16}")
    a(f"ds_read_b128 v[{Lf}:{Lf+3}], v{V_T0}")
    a(f"ds_read_b128 v[{Lf+4}:{Lf+7}], v{V_T0} offset:1024")
    a("s_waitcnt lgkmcnt(0)")
    for p in range(2):
        for (T, A, B) in ((T2, Lf, KMf), (T3, Lf, VMf), (T4, Lf, Lf)):
            a(mfma(T, A + 4 * p, B + 4 * p, "0" if p == 0 else None))
    a(f"s_lshl_b32 s31, s{S_J}, 2")
    a(f"s_add_u32 s31, s31, s{S_A}")
    a(f"s_mul_i32 s31, s31, {KV_HEAD}")
    a(f"s_add_u32 s31, s31, {KV:#x}")
    odd_masks(a)
    a(f"s_and_b64 s[58:59], s[56:57], s[{M_Q1}:{M_Q1+1}]")
    d = V_T0; q = V_T0 + 1; ad = V_T0 + 2; val = V_T0 + 3; ad2 = V_T0 + 4
    a(f"v_and_b32 v{d}, 15, v1")
    a(f"v_lshrrev_b32 v{q}, 4, v1")
    a(f"v_lshlrev_b32 v{ad}, 8, v{q}")
    a(f"v_lshl_add_u32 v{ad}, v{d}, 2, v{ad}")
    for i in range(4):
        a(f"buffer_atomic_add_f32 v{T1+i}, v{ad}, {WSR}, s31 offen offset:{64*i}")
    a(f"v_lshlrev_b32 v{ad}, 6, v{q}")
    a(f"v_add_u32 v{ad}, {16*64-64}, v{ad}")
    a(f"v_lshl_add_u32 v{ad}, v{d}, 2, v{ad}")
    a(f"v_cndmask_b32 v{val}, v{T2}, v{T2+2}, s[58:59]")
    a(f"s_or_b64 s[60:61], s[{M_Q1}:{M_Q1+1}], s[{M_Q3}:{M_Q3+1}]")
    a(f"s_mov_b64 exec, s[60:61]")
    a(f"buffer_atomic_add_f32 v{val}, v{ad}, {WSR}, s31 offen")
    a(f"s_mov_b64 exec, s[{M_Q1}:{M_Q1+1}]")
    a(f"v_cndmask_b32 v{val+2}, v{T2+1}, v{T2+3}, s[56:57]")
    a(f"buffer_atomic_add_f32 v{val+2}, v{ad}, {WSR}, s31 offen offset:64")
    a(f"s_mov_b64 exec, s[{M_Q0}:{M_Q0+1}]")
    a(f"v_lshlrev_b32 v{ad2}, 2, v{d}")
    a(f"v_cndmask_b32 v{val+3}, v{T3}, v{T3+2}, s[56:57]")
    a(f"v_cndmask_b32 v{val+4}, v{T3+1}, v{T3+3}, s[56:57]")
    a(f"buffer_atomic_add_f32 v{val+3}, v{ad2}, {WSR}, s31 offen offset:1280")
    a(f"buffer_atomic_add_f32 v{val+4}, v{ad2}, {WSR}, s31 offen offset:{1280+128}")
    a(f"s_mov_b64 exec, -1")
    a(f"s_and_b32 s52, s{S_A}, 1")
    a(f"s_lshl_b32 s52, s52, 1")
    a(f"s_lshl_b32 s53, 0x00030003, s52")
    a(f"s_mov_b32 s62, s53"); a(f"s_mov_b32 s63, s53")
    a(f"v_subrev_u32 v{ad2}, s52, v{d}")
    a(f"v_lshlrev_b32 v{ad2}, 7, v{ad2}")
    a(f"v_lshl_add_u32 v{ad2}, v{q}, 2, v{ad2}")
    a(f"v_add_u32 v{ad2}, {1280 + 64 - 4}, v{ad2}")
    a(f"v_cndmask_b32 v{TMP}, v{T4}, v{T4+2}, s[58:59]")
    a(f"v_cndmask_b32 v{TMP+1}, v{T4+1}, v{T4+3}, s[56:57]")
    a(f"s_and_b64 exec, s[60:61], s[62:63]")
    a(f"buffer_atomic_add_f32 v{TMP}, v{ad2}, {WSR}, s31 offen")
    a(f"s_and_b64 exec, s[{M_Q1}:{M_Q1+1}], s[62:63]")
    a(f"buffer_atomic_add_f32 v{TMP+1}, v{ad2}, {WSR}, s31 offen offset:4")
    a(f"s_mov_b64 exec, -1")

def p1_q(a):
    a.comment("---- P1 Q wave (tiles QM [W as A], L [x as A]) ----")
    a(f"s_sub_u32 s{S_A}, s3, 4")
    p1_stream_setup(a, 2)
    frag_addrs(a)
    def init(a):
        for r in range(16): a(f"v_mov_b32 v{ACC+r}, 0")
        a(f"s_mov_b32 s52, 0x10001000"); a(f"s_mov_b32 s53, 0x10001000")
        a(f"v_cndmask_b32 v{ACC+16}, 0, 1.0, s[52:53]")
        for r in range(1, 16): a(f"v_mov_b32 v{ACC+16+r}, v{ACC+16}")
    a("s_setprio 1")
    p1_gemm(a, [True, False], init)
    stamp(a, 5)
    phi_consts(a)
    QM, LL = ACC, ACC + 16
    PH = WR
    phi_many(a, [(PH + i, LL + i) for i in range(16)], V_T0)
    a(f"s_mov_b32 s52, 0x0f0f0f0f"); a(f"s_mov_b32 s53, 0x0f0f0f0f")
    for i in range(16):
        a(f"v_cndmask_b32 v{LL+i}, v{LL+i}, v{PH+i}, s[52:53]")
    Lf = XF
    pack_frags(a, LL, Lf)
    a(f"s_lshl_b32 s31, s{S_A}, 11")
    a(f"s_add_u32 s31, s31, {LXCH}")
    a(f"v_add_u32 v{V_T0}, s31, v{V_L16}")
    a(f"ds_write_b128 v{V_T0}, v[{Lf}:{Lf+3}]")
    a(f"ds_write_b128 v{V_T0}, v[{Lf+4}:{Lf+7}] offset:1024")
    a(f"s_lshl_b32 s31, s{S_A}, 2")
    a(f"s_add_u32 s31, s31, {LFLAG}")
    a(f"v_mov_b32 v{V_T0+1}, s31")
    a(f"v_mov_b32 v{V_T0+2}, 1")
    a("s_waitcnt lgkmcnt(0)")
    a(f"ds_write_b32 v{V_T0+1}, v{V_T0+2}")
    phi_many(a, [(QM + i, QM + i) for i in range(16)], V_T0 + 0)
    P = XF + 8
    for rt in range(4):
        a(f"v_cvt_pk_bf16_f32 v{P+2*rt}, v{QM+4*rt}, v{QM+4*rt+1}")
        a(f"v_cvt_pk_bf16_f32 v{P+2*rt+1}, v{QM+4*rt+2}, v{QM+4*rt+3}")
    a(f"s_mul_i32 s32, s{S_A}, 2304")
    a(f"s_add_u32 s32, s32, {QSTG}")
    a(f"v_and_b32 v{V_T0}, 15, v1")
    a(f"v_lshrrev_b32 v{V_T0+1}, 4, v1")
    a(f"v_mul_u32_u24 v{V_T0+2}, 36, v{V_T0}")
    a(f"v_add_u32 v{V_T0+2}, s32, v{V_T0+2}")
    a(f"v_lshl_add_u32 v{V_T0+2}, v{V_T0+1}, 3, v{V_T0+2}")
    a(f"v_add_u32 v{V_T0+3}, 1152, v{V_T0+2}")
    for rt in range(4):
        ad = V_T0 + 2 + (rt >> 1); o = 144 * (rt & 1)
        a(f"ds_write2_b32 v{ad}, v{P+2*rt}, v{P+2*rt+1} offset0:{o} offset1:{o+1}")
    a(f"s_and_b32 s52, s{S_A}, 1")
    a(f"s_lshl_b32 s52, s52, 1")
    a(f"s_lshl_b32 s53, 0x03000300, s52")
    a(f"s_mov_b32 s62, s53"); a(f"s_mov_b32 s63, s53")
    a(f"s_add_u32 s52, s52, 8")
    a(f"v_subrev_u32 v{V_T0+4}, s52, v{V_T0}")
    a(f"v_lshlrev_b32 v{V_T0+4}, 1, v{V_T0+4}")
    a(f"v_mul_u32_u24 v{V_T0+5}, 144, v{V_T0+1}")
    a(f"v_add3_u32 v{V_T0+4}, v{V_T0+4}, v{V_T0+5}, s32")
    a(f"s_mov_b64 exec, s[62:63]")
    for rt in range(4):
        for h in range(2):
            r = Lf + 2 * rt + h
            o = 576 * rt + 72 * h + 32
            a(f"ds_write_b16 v{V_T0+4}, v{r} offset:{o}")
            a(f"ds_write_b16_d16_hi v{V_T0+4}, v{r} offset:{o+36}")
    a("s_mov_b64 exec, -1")
    a(f"v_add_u32 v{V_T0+5}, s32, v{V_L16}")
    a("s_waitcnt lgkmcnt(0)")
    for i in range(3):
        a(f"ds_read_b128 v[{WR+4*i}:{WR+4*i+3}], v{V_T0+5} offset:{1024*i}")
    a(f"s_lshl_b32 s31, s{S_J}, 2")
    a(f"s_add_u32 s31, s31, s{S_A}")
    a(f"s_mul_i32 s31, s31, 73728")
    a(f"s_mul_i32 s32, s{S_RBK}, 2304")
    a(f"s_add_u32 s31, s31, s32")
    a(f"s_add_u32 s31, s31, {PQ:#x}")
    a("s_waitcnt lgkmcnt(0)")
    for i in range(2):
        a(f"buffer_store_dwordx4 v[{WR+4*i}:{WR+4*i+3}], v{V_L16}, {WSR}, s31 offen offset:{1024*i} sc1")
    a(f"s_mov_b64 exec, s[{M_Q0}:{M_Q0+1}]")
    a(f"buffer_store_dwordx4 v[{WR+8}:{WR+11}], v{V_L16}, {WSR}, s31 offen offset:2048 sc1")
    a("s_mov_b64 exec, -1")
```

```python
import sys
sys.path.insert(0, "gen")
from common import *
import common, p1, helpers, mid, mlp
from common import stamp, stamp_dump
from gemm import *

def br_wave(a, cond, val, target, taken_if=True):
    a(f"s_cmp_{cond}_u32 s3, {val}")
    a(f"s_cbranch_scc{1 if taken_if else 0} {target}")

def phase_p01(a, K):
    br_wave(a, "ge", 8, "L_p0_help")
    p1.p0_ln(a)
    a("s_waitcnt vmcnt(0) lgkmcnt(0)")
    p1.finish_epoch(a)
    stamp(a, 3)
    a("s_barrier")
    br_wave(a, "eq", 0, "L_p0_nf", False)
    a("s_lshl_b32 s31, s2, 7")
    set_flag(a, F_XN, 31)
    p1.p1_wait_xn(a)
    a.label("L_p0_nf")
    a("s_barrier")
    br_wave(a, "ge", 4, "L_p1_q")
    p1.p1_kv(a)
    stamp(a, 6)
    a("s_branch L_p1_end")
    a.label("L_p1_q")
    p1.p1_q(a)
    a("s_setprio 0")
    stamp(a, 6)
    a("s_branch L_p1_end")
    a.label("L_p0_help")
    a(f"v_lshlrev_b32 v12, 2, v1")
    a(f"v_add_u32 v12, {p1.LFLAG}, v12")
    a("v_mov_b32 v13, 0")
    a("s_mov_b64 exec, 0x1f")
    a("ds_write_b32 v12, v13")
    a("s_mov_b64 exec, -1")
    a("s_mov_b32 s73, 0")
    a("s_cmp_ge_u32 s2, 144")
    a("s_cbranch_scc1 L_p0_small")
    helpers.p0_issue(a)
    a("s_waitcnt lgkmcnt(0)")
    p1.finish_epoch(a)
    a("s_barrier")
    helpers.p0_finish(a)
    a("s_branch L_p0_jx")
    a.label("L_p0_small")
    a("s_waitcnt lgkmcnt(0)")
    p1.finish_epoch(a)
    br_wave(a, "eq", 8, "L_p0_n8", False)
    helpers.code_prefetch(a, K, "L_code_end")
    helpers.zero_kv(a)
    a("s_branch L_p0_sb")
    a.label("L_p0_n8")
    br_wave(a, "eq", 11, "L_p0_n11", False)
    helpers.job_setup_small(a, LDS_A1 + 40960)
    a(f"s_mov_b32 s73, s{helpers.S_ACT}")
    a("s_branch L_p0_sb")
    a.label("L_p0_n11")
    a("s_sub_u32 s31, s3, 9")
    a("s_mul_i32 s31, s31, 4608")
    a(f"s_add_u32 s72, s31, {LDS_A1 + 45568}")
    helpers.job_setup_big(a, 3, 0)
    a(f"s_mov_b32 s{helpers.S_SCR}, s72")
    a(f"s_mov_b32 s73, s{helpers.S_ACT}")
    a.label("L_p0_sb")
    a("s_barrier")
    helpers.helper_arrive(a)
    a("s_cmp_eq_u32 s73, 0"); a("s_cbranch_scc1 L_p0_jx")
    helpers.job_loads(a)
    br_wave(a, "eq", 11, "L_p0_jx", False)
    helpers.job_tr(a)
    helpers.job_stores(a)
    a("s_mov_b32 s73, 2")
    a.label("L_p0_j")
    a.label("L_p0_jx")
    a("s_barrier")
    br_wave(a, "eq", 8, "L_p1_h8", False)
    p1.p1_mapping(a)
    p1.p1_xn_dma(a)
    a.label("L_p1_h8")
    a("s_barrier")
    br_wave(a, "eq", 8, "L_p1_h8b", False)
    a("s_waitcnt vmcnt(0)")
    a.label("L_p1_h8b")
    a("s_barrier")
    br_wave(a, "eq", 11, "L_p1_h11")
    a("s_cmp_eq_u32 s73, 1"); a("s_cbranch_scc0 L_p1_end")
    helpers.job_tr(a)
    stamp(a, 6)
    a("s_branch L_p1_end")
    a.label("L_p1_h11")
    a("s_cmp_eq_u32 s73, 2"); a("s_cbranch_scc0 L_p1_h11b")
    a("s_waitcnt vmcnt(0)")
    p1.p1_mapping(a)
    a(f"s_lshl_b32 s31, s{p1.S_J}, 2")
    a("s_lshr_b32 s33, 0xcc88cc89, s31")
    a("s_and_b32 s33, s33, 15")
    a(f"s_lshl_b32 s31, s{p1.S_J}, 7")
    a(f"s_lshl_b32 s32, s{p1.S_J}, 10")
    arrive_last(a, C_SM, 31, None, F_SMD, 32, 8, target_sreg=33)
    a.label("L_p1_h11b")
    a(f"v_lshlrev_b32 v12, 10, v1")
    a(f"s_lshl_b32 s31, s{S_XCD}, 7")
    a(f"s_add_u32 s31, s31, {F_SMD:#x}")
    a(f"v_add_u32 v12, s31, v12")
    poll_flags(a, 12, 13, 0xff, sleep=8)
    a.label("L_p1_end")
    a("s_waitcnt vmcnt(0) lgkmcnt(0)")
    stamp(a, 7)
    a("s_barrier")
    stamp(a, 8)
    br_wave(a, "eq", 0, "L_p1_nf", False)
    a(f"s_lshl_b32 s31, s{p1.S_J}, 7")
    a(f"s_lshl_b32 s32, s{p1.S_J}, 10")
    arrive_last(a, C_P1, 31, 32, F_G, 32, 8)
    a.label("L_p1_nf")
    br_wave(a, "lt", 9, "L_p1_ns")
    br_wave(a, "eq", 11, "L_p1_ns")
    a("s_cmp_eq_u32 s73, 1"); a("s_cbranch_scc0 L_p1_ns")
    helpers.job_stores(a)
    a.label("L_p1_ns")

def phases_mid(a, stop_after):
    M = mid
    M.mid_mapping(a)
    a(f"v_lshlrev_b32 v{p1.V_L16}, 4, v1")
    M.ep_addrs(a)
    p1.tile_dma_voff(a, M.V_TD, "s4")
    br_wave(a, "ge", 9, "L_p2_nw")
    M.w_loads(a, 0, list(range(18)))
    a.label("L_p2_nw")
    br_wave(a, "eq", 11, "L_p2_np", False)
    a(f"v_lshlrev_b32 v12, 10, v1")
    a(f"s_lshl_b32 s31, s{S_XCD}, 7")
    a(f"s_add_u32 s31, s31, {F_G:#x}")
    a(f"v_add_u32 v12, s31, v12")
    poll_flags(a, 12, 13, 0xff)
    a("s_cmp_eq_u32 s2, 0"); a("s_cbranch_scc0 L_p2_ne")
    a("s_mov_b32 s31, 0")
    set_flag(a, WS_EPOCH, 31, 12, 13)
    a.label("L_p2_ne")
    a("s_waitcnt lgkmcnt(0)")
    a.label("L_p2_np")
    stamp(a, 10)
    a("s_barrier")
    br_wave(a, "lt", 9, "L_p2_na")
    br_wave(a, "eq", 11, "L_p2_na")
    a("s_cmp_eq_u32 s73, 1"); a("s_cbranch_scc0 L_p2_na")
    a("s_waitcnt vmcnt(0)")
    a(f"s_lshl_b32 s31, s58, 7")
    arrive_last(a, C_PK, 31, 27, F_PKD, 31, 1)
    a.label("L_p2_na")
    M.p2_ostage(a)
    a("s_waitcnt vmcnt(0)")
    a("s_barrier")
    br_wave(a, "eq", 11, "L_p2_w11")
    M.p2_ostage_compute(a)
    br_wave(a, "ge", 9, "L_p2_nx")
    M.xres_loads(a, p1.XS, None, M.XR)
    a.label("L_p2_nx")
    a("s_waitcnt lgkmcnt(0)")
    a("s_branch L_p2_b")
    a.label("L_p2_w11")
    helpers.job_setup_big(a, 4, LDS_MISC + 4096)
    a(f"s_mov_b32 s73, s{helpers.S_ACT}")
    a("s_cmp_eq_u32 s73, 0"); a("s_cbranch_scc1 L_p2_b")
    helpers.job_loads(a)
    a.label("L_p2_b")
    stamp(a, 11)
    a("s_barrier")
    br_wave(a, "ge", 9, "L_p2_c")
    M.small_gemm(a, next_m=1)
    a("s_waitcnt vmcnt(9)")
    M.p2_epilogue(a)
    a("s_waitcnt lgkmcnt(0)")
    a.label("L_p2_c")
    stamp(a, 12)
    a("s_barrier")
    M.coop_store(a, M.L_HS, HB, HSTAT)
    a("s_waitcnt vmcnt(0)")
    a("s_barrier")
    br_wave(a, "eq", 11, "L_p2_f", False)
    M.flag_idx128(a, F_P2)
    a.label("L_p2_f")
    stamp(a, 13)
    br_wave(a, "ge", 9, "L_p2b_nw")
    M.w_loads(a, 1, list(range(9, 18)))
    a.label("L_p2b_nw")
    br_wave(a, "eq", 10, "L_p2b_nc", False)
    M.c1_wave(a)
    a.label("L_p2b_nc")
    br_wave(a, "eq", 11, "L_p2b_np", False)
    a(f"s_lshl_b32 s31, s{M.S_RB32}, 9")
    a(f"s_add_u32 s31, s31, {F_P2:#x}")
    a(f"v_lshlrev_b32 v12, 7, v1")
    a(f"v_add_u32 v12, s31, v12")
    poll_flags(a, 12, 13, 0xf)
    a("s_waitcnt lgkmcnt(0)")
    a.label("L_p2b_np")
    a("s_barrier")
    br_wave(a, "ge", 9, "L_p2b_b")
    a(f"s_mul_i32 s33, s{M.S_RB32}, 9216")
    a(f"s_add_u32 s33, s33, {HB:#x}")
    p1.tile_dma(a, M.V_TD, 33, 2304, 4, M.L_TILE)
    a("s_waitcnt vmcnt(0)")
    a.label("L_p2b_b")
    br_wave(a, "eq", 9, "L_p2b_ns", False)
    M.row_stats_wave(a, HSTAT, True)
    a.label("L_p2b_ns")
    a("s_waitcnt lgkmcnt(0)")
    a("s_barrier")
    br_wave(a, "ge", 9, "L_p2b_h")
    M.small_gemm(a, next_m=2)
    M.p2b_epilogue(a)
    a("s_waitcnt lgkmcnt(0)")
    a("s_branch L_p2b_c")
    a.label("L_p2b_h")
    br_wave(a, "eq", 10, "L_p2b_h10", False)
    mlp.pk_wait(a, F_PKD)
    a.label("L_p2b_h10")
    br_wave(a, "eq", 11, "L_p2b_c", False)
    a("s_cmp_eq_u32 s73, 1"); a("s_cbranch_scc0 L_p2b_c")
    helpers.job_tr(a)
    helpers.job_stores(a)
    a.label("L_p2b_c")
    a("s_barrier")
    M.coop_store(a, M.L_STG, HH, None)
    a("s_waitcnt vmcnt(0)")
    a("s_barrier")
    br_wave(a, "eq", 11, "L_p2b_f", False)
    M.flag_idx128(a, F_P2B)
    a.label("L_p2b_f")
    stamp(a, 14)
    br_wave(a, "ge", 9, "L_p3_nw")
    M.w_loads(a, 2, list(range(9, 18)))
    a.label("L_p3_nw")
    br_wave(a, "eq", 11, "L_p3_np", False)
    a(f"s_lshl_b32 s31, s{M.S_RB32}, 2")
    a(f"s_sub_u32 s31, s31, 4")
    a(f"v_add_u32 v12, s31, v1")
    a(f"v_max_i32 v12, 0, v12")
    a(f"v_min_i32 v12, 255, v12")
    a(f"v_lshlrev_b32 v12, 7, v12")
    a(f"v_add_u32 v12, {F_P2B:#x}, v12")
    poll_flags(a, 12, 13, 0xfff)
    a.label("L_p3_np")
    a("s_barrier")
    br_wave(a, "ge", 9, "L_p3_b")
    M.p3_tile_dma(a)
    a("s_waitcnt vmcnt(0)")
    a.label("L_p3_b")
    a("s_barrier")
    br_wave(a, "ge", 9, "L_p3_h")
    M.small_gemm(a)
    M.p3_epilogue(a)
    a("s_waitcnt lgkmcnt(0)")
    a("s_branch L_p3_c")
    a.label("L_p3_h")
    br_wave(a, "eq", 9, "L_p3_c")
    br_wave(a, "eq", 10, "L_p3_h4")
    a("s_cmp_eq_u32 s73, 1"); a("s_cbranch_scc0 L_p3_c")
    a("s_waitcnt vmcnt(0)")
    a(f"s_lshl_b32 s31, s{S_XCD}, 7")
    arrive_last(a, C_PK4, 31, 27, F_PKD4, 31, 1)
    a("s_branch L_p3_c")
    a.label("L_p3_h4")
    a.label("L_p3_c")
    a("s_barrier")
    M.coop_store(a, M.L_STG, X1, X1STAT)
    a("s_waitcnt vmcnt(0)")
    a("s_barrier")
    br_wave(a, "eq", 11, "L_p3_f", False)
    M.flag_idx128(a, F_P3)
    a.label("L_p3_f")
    stamp(a, 15)

def phase_mlp(a):
    Q = mlp
    Q.mlp_prologue(a)
    st = Stream(3, Q.DEPTH, Q.WR, p1.V_L16, Q.S_SO, 3072)
    br_wave(a, "eq", 9, "L_m_nc", False)
    Q.c3_wave(a)
    a.label("L_m_nc")
    for u in range(2):
        for x in st.loads(u): a(x)
    br_wave(a, "eq", 11, "L_m_np", False)
    a(f"s_lshl_b32 s31, s{Q.S_RB}, 10")
    a(f"s_add_u32 s31, s31, {F_P3:#x}")
    a(f"v_lshlrev_b32 v12, 7, v1")
    a(f"v_add_u32 v12, s31, v12")
    poll_flags(a, 12, 13, 0xff)
    a.label("L_m_np")
    a("s_barrier")
    br_wave(a, "ge", 9, "L_m_nd")
    a(f"s_mul_i32 s33, s{Q.S_RB}, {64*288}")
    a(f"s_add_u32 s33, s33, {X1:#x}")
    p1.tile_dma(a, Q.V_TD, 33, 2304, 8, Q.L_X1)
    a.label("L_m_nd")
    br_wave(a, "eq", 11, "L_m_ns", False)
    Q.row_stats(a)
    a.label("L_m_ns")
    br_wave(a, "eq", 10, "L_m_n10", False)
    Q.pk_wait(a, F_PKD4)
    a.label("L_m_n10")
    a("s_barrier")
    for u in range(2, Q.DEPTH):
        for x in st.loads(u): a(x)
    a(f"s_waitcnt vmcnt({3*(Q.DEPTH-2)})")
    br_wave(a, "eq", 9, "L_m_nc2", False)
    Q.c3_wave_finish(a)
    a.label("L_m_nc2")
    br_wave(a, "eq", 11, "L_m_ns2", False)
    Q.row_stats_finish(a)
    a.label("L_m_ns2")
    for r in range(48): a(f"v_mov_b32 v{Q.ACC+r}, 0")
    a("s_waitcnt lgkmcnt(0)")
    a("s_barrier")
    stamp(a, 16)
    for x in act_reads(Q.XF, 0, 4, p1.V_XE, p1.V_XO, 0): a(x)
    gemm_stream(a, st, Q, first=True)
    stamp(a, 17)
    Q.gemm1_epilogue(a)
    a("s_waitcnt lgkmcnt(0)")
    a("s_barrier")
    stamp(a, 18)
    p1.frag_addrs(a, p1.V_XE, p1.V_XO, Q.L_G)
    for r in range(48): a(f"v_mov_b32 v{Q.ACC+r}, 0")
    for x in act_reads(Q.XF, 0, 4, p1.V_XE, p1.V_XO, 0): a(x)
    gemm_stream(a, st, Q, first=False)
    stamp(a, 19)
    Q.gemm2_epilogue(a)
    a("s_waitcnt lgkmcnt(0)")
    a("s_barrier")
    Q.part_store(a)
    a("s_waitcnt vmcnt(0)")
    a("s_barrier")
    stamp(a, 20)
    br_wave(a, "eq", 11, "L_m_nf", False)
    a(f"s_lshl_b32 s31, s{Q.S_RB}, 3")
    a(f"s_add_u32 s31, s31, s{Q.S_J8}")
    a("s_lshl_b32 s31, s31, 7")
    set_flag(a, F_MLP, 31, 12, 13)
    a(f"s_lshl_b32 s31, s{Q.S_RB}, 10")
    a(f"s_add_u32 s31, s31, {F_MLP:#x}")
    a(f"v_lshlrev_b32 v12, 7, v1")
    a(f"v_add_u32 v12, s31, v12")
    poll_flags(a, 12, 13, 0xff)
    a.label("L_m_nf")
    a("s_barrier")
    stamp(a, 21)
    Q.final_reduce(a)
    stamp(a, 22)

def gemm_stream(a, st, Q, first):
    D, NB, NR = st.D, st.NB, 4
    base = 0 if first else 18
    acc_of = lambda t, rt: Q.ACC + 16 * t + 4 * rt
    for ks in range(18):
        n = base + ks
        slot = n % D
        cur = ks & 1; nxt = 1 - cur
        mf = []
        for rt in range(NR):
            for t in range(NB):
                x = Q.XF + 4 * (cur * NR + rt); w = st.reg(slot, t)
                mf.append(mfma(acc_of(t, rt), w, x))
        remaining = 36 - (n + 1)
        a(f"s_waitcnt vmcnt({min(D - 1, remaining)*NB}) lgkmcnt(0)")
        if ks < 17:
            bse = p1.V_XO if (ks + 1) & 1 else p1.V_XE
            rd = [f"ds_read_b128 v[{Q.XF+4*(nxt*NR+rt)}:{Q.XF+4*(nxt*NR+rt)+3}], v{bse} offset:{rt*18432 + ((ks+1)>>1)*128}" for rt in range(NR)]
        else: rd = []
        interleave(a, mf, rd, lead=1, per=2)
        if n + D < 36:
            if n + D == 18:
                a(f"s_add_u32 s{st.soff}, s{st.soff}, {W4P - W3P - 18*3072:#x}")
            for x in st.loads(slot): a(x)

TLB = False
WARM = False
def tlb_touch(a):
    L = a.newlabel("Ltlb")
    br_wave(a, "eq", 10, L, False)
    a("s_load_dwordx4 s[36:39], s[0:1], 48")
    a("s_load_dwordx4 s[40:43], s[0:1], 32")
    a("s_load_dwordx2 s[44:45], s[0:1], 16")
    a("v_lshlrev_b32 v12, 21, v1")
    a("s_mov_b64 exec, 0xffffff")
    a(f"buffer_load_dword v164, v12, s[{SRD_WS}:{SRD_WS+3}], 0 offen")
    a("s_mov_b64 exec, 0x3")
    a(f"buffer_load_dword v165, v12, s[{SRD_OUT}:{SRD_OUT+3}], 0 offen")
    a("s_waitcnt lgkmcnt(0)")
    a("s_mov_b64 exec, 0x7")
    a("global_load_dword v166, v12, s[36:37]")
    a("global_load_dword v167, v12, s[38:39]")
    a("s_mov_b64 exec, 0x1")
    a("global_load_dword v163, v12, s[40:41]")
    a("global_load_dword v162, v12, s[42:43]")
    a("global_load_dword v161, v12, s[44:45]")
    a("s_mov_b64 exec, -1")
    a(f"s_load_dword s{S_T}, s[34:35], 0")
    a.label(L)

PRELUDE = None
RT = False
def build(stop_after="ALL"):
    a = Asm()
    K = NAME + "_kernel"
    a.label(K)
    p1.prologue(a)
    if common.STAMP_ON:
        for i in range(common.NSTAMP): a(f"s_mov_b32 s{74+i}, 0")
    stamp(a, 0)
    if common.STAMP_ON or RT:
        a("s_memrealtime s[100:101]"); a("s_waitcnt lgkmcnt(0)"); a("s_mov_b32 s99, s100")
    if TLB: tlb_touch(a)
    phase_p01(a, K)
    phases_mid(a, stop_after)
    phase_mlp(a)
    if common.STAMP_ON:
        a("s_memrealtime s[100:101]"); a("s_waitcnt lgkmcnt(0)"); a("s_mov_b32 s98, s100")
    if RT:
        a("s_cmp_eq_u32 s3, 0"); a("s_cbranch_scc0 L_exit")
        a("s_memrealtime s[100:101]")
        a("s_load_dwordx2 s[4:5], s[0:1], 72")
        a("s_waitcnt lgkmcnt(0)")
        a("s_mov_b64 exec, 1")
        a("v_mov_b32 v2, s100"); a("v_mov_b32 v3, 0")
        a("global_atomic_umax v3, v2, s[4:5] sc1")
        a("s_not_b32 s99, s99")
        a("v_mov_b32 v2, s99")
        a("global_atomic_umax v3, v2, s[4:5] offset:4 sc1")
    stamp_dump(a)
    a.label("L_exit")
    a("s_endpgm")
    a.label("L_code_end")
    n = a.fix_hazards()
    errs = a.check_waits([K])
    for e in errs: print("WAITCHECK:", e)
    hdr = open("cdna_kernels/" + NAME + ".s.ref").read().split("; Override launch")[0]
    txt = hdr + "; @launch grid=(256,1,1) block=(768,1,1) lds=163840\n"
    txt += '.amdgcn_target "amdgcn-amd-amdhsa--gfx950"\n.text\n'
    txt += f".globl {K}\n.p2align 8\n.type {K},@function\n"
    txt += a.text()
    txt += f""".section .rodata,"a"
.p2align 6
.amdhsa_kernel {K}
  .amdhsa_next_free_vgpr 168
  .amdhsa_next_free_sgpr 102
  .amdhsa_accum_offset 168
  .amdhsa_group_segment_fixed_size 0
  .amdhsa_kernarg_size 88
  .amdhsa_user_sgpr_count 2
  .amdhsa_user_sgpr_kernarg_segment_ptr 1
  .amdhsa_system_sgpr_workgroup_id_x 1
  .amdhsa_float_denorm_mode_32 3
.end_amdhsa_kernel
"""
    return txt, n

if __name__ == "__main__":
    if "--stamp" in sys.argv:
        common.STAMP_ON = True; sys.argv.remove("--stamp")
    if "--nowarm" in sys.argv:
        WARM = False; sys.argv.remove("--nowarm")
    if "--tlb" in sys.argv:
        TLB = True; sys.argv.remove("--tlb")
    if "--rt" in sys.argv:
        RT = True; sys.argv.remove("--rt")
    stop = sys.argv[1] if len(sys.argv) > 1 else "ALL"
    out = sys.argv[2] if len(sys.argv) > 2 else "k.s"
    txt, n = build(stop)
    open(out, "w").write(txt)
    print("nops inserted:", n, "bytes:", len(txt))
```
